```python
import torch

def _softmax(x, axis=-1):
    return torch.softmax(x, dim=axis)
def _gelu(x):
    return torch.nn.functional.gelu(x, approximate="tanh")
def _silu(x):
    return torch.nn.functional.silu(x)
def _sigmoid(x):
    return torch.sigmoid(x)
def _layernorm(x, axis=-1, eps=1e-5):
    m = x.mean(dim=axis, keepdim=True)
    v = x.var(dim=axis, keepdim=True, unbiased=False)
    return (x - m) / torch.sqrt(v + eps)
def _scatter_add(tgt, idx, src, axis=0):
    return tgt.clone().index_add_(axis, idx, src)
def _segment_sum(src, seg, n):
    out = torch.zeros((n,) + src.shape[1:], dtype=src.dtype)
    return out.index_add_(0, seg, src)
def _pad(x, pw):
    flat = tuple(v for pair in reversed(pw) for v in pair)
    return torch.nn.functional.pad(x, flat)

kernel_name = 'parallel_sum__sliding_block_cached__glu_gated_geglu__decode'

def setup_inputs():

    _w = (lambda a: (lambda t: t.to(torch.bfloat16) if t.is_floating_point() else t)(torch.as_tensor(a)))
    def _A_setup():
        B, Sq, D = 1, 1, 512
        Hq, Hkv, Sk, Dh = 32, 8, 65536, 128
        assert Hq % Hkv == 0, (Hq, Hkv)
        return {
            "x": _w((lambda *s: torch.randn(*s, dtype=torch.bfloat16) * 0.05)(B, Sq, D)),
            "k_cache": _w((lambda *s: torch.randn(*s, dtype=torch.bfloat16) * 1.6)(B, Hkv, Sk, Dh)),
            "v_cache": _w((lambda *s: torch.randn(*s, dtype=torch.bfloat16) * 0.8)(B, Hkv, Sk, Dh)),
            "wq": _w((lambda *s: torch.randn(*s, dtype=torch.bfloat16) * 1.6)(D, Hq * Dh) * (D ** -0.5)),
            "wo": _w((lambda *s: torch.randn(*s, dtype=torch.bfloat16) * 0.8)(Hq * Dh, D) * ((Hq * Dh) ** -0.5)),
        }
    _A_in = _A_setup()

    def _B_setup():
        B, S, Dm, Df = 1, 1, 512, 1792
        return {
            "x": _w((lambda *s: torch.randn(*s, dtype=torch.bfloat16) * 0.05)(B, S, Dm)),
            "w_gate": _w((lambda *s: torch.randn(*s, dtype=torch.bfloat16) * 0.4)(Dm, Df) * (Dm ** -0.5)),
            "w_up": _w((lambda *s: torch.randn(*s, dtype=torch.bfloat16) * 0.4)(Dm, Df) * (Dm ** -0.5)),
            "w_down": _w((lambda *s: torch.randn(*s, dtype=torch.bfloat16) * 0.4)(Df, Dm) * (Df ** -0.5)),
        }
    _B_in = _B_setup()

    return {
        "A_x": _A_in["x"],
        "A_k_cache": _A_in["k_cache"],
        "A_v_cache": _A_in["v_cache"],
        "A_wq": _A_in["wq"],
        "A_wo": _A_in["wo"],
        "B_x": _B_in["x"],
        "B_w_gate": _B_in["w_gate"],
        "B_w_up": _B_in["w_up"],
        "B_w_down": _B_in["w_down"],
    }

def reference(A_x, A_k_cache, A_v_cache, A_wq, A_wo, B_x, B_w_gate, B_w_up, B_w_down):
    def _A_ref(x, k_cache, v_cache, wq, wo):
        B, Sq, D = x.shape
        Hq, Dh = 32, 128
        Hkv, Sk = k_cache.shape[1], k_cache.shape[2]
        W = min(4096, max(256, Sk // 4))
        rep = Hq // Hkv
        q = (lambda x, *d: x.permute(*d))((x @ wq).reshape(B, Sq, Hq, Dh), 0, 2, 1, 3)
        k = (lambda x, n, axis: torch.repeat_interleave(x, n, dim=axis))(k_cache[:, :, Sk - W:, :], rep, axis=1)
        v = (lambda x, n, axis: torch.repeat_interleave(x, n, dim=axis))(v_cache[:, :, Sk - W:, :], rep, axis=1)
        scores = torch.einsum("bhqd,bhkd->bhqk", q, k) * (Dh ** -0.5)
        p = _softmax(scores, axis=-1)
        o = torch.einsum("bhqk,bhkd->bhqd", p, v)
        return (lambda x, *d: x.permute(*d))(o, 0, 2, 1, 3).reshape(B, Sq, Hq * Dh) @ wo

    def _B_ref(x, w_gate, w_up, w_down):
        g = torch.einsum("bsd,df->bsf", x, w_gate)
        u = torch.einsum("bsd,df->bsf", x, w_up)
        h = _gelu(g) * u
        return torch.einsum("bsf,fd->bsd", h, w_down)

    x = A_x
    xn = _layernorm(x, axis=-1)
    return x + _A_ref(xn, A_k_cache, A_v_cache, A_wq, A_wo) + _B_ref(xn, B_w_gate, B_w_up, B_w_down)
```

```python
import re

TRANS = ("v_exp_f32", "v_log_f32", "v_rcp_f32", "v_rsq_f32", "v_sqrt_f32", "v_sin_f32", "v_cos_f32", "v_rcp_iflag_f32")

def regs_of(tok):
    tok = tok.strip()
    out = set()
    tok = tok.lstrip("-")
    m = re.fullmatch(r"abs\((.*)\)", tok)
    if m: tok = m.group(1)
    tok = tok.strip("|")
    m = re.fullmatch(r"([vsa])\[(\d+):(\d+)\]", tok)
    if m:
        for i in range(int(m.group(2)), int(m.group(3)) + 1): out.add(m.group(1) + str(i))
        return out
    m = re.fullmatch(r"([vsa])(\d+)", tok)
    if m:
        out.add(tok); return out
    if tok in ("vcc", "vcc_lo", "vcc_hi"): out.add("vcc")
    if tok in ("exec", "exec_lo", "exec_hi"): out.add("exec")
    if tok == "m0": out.add("m0")
    return out

class Ins:
    def __init__(self, text):
        self.text = text
        t = text.split(";")[0].strip()
        self.label = t.endswith(":")
        self.empty = (t == "" or t.startswith("."))
        self.op = ""
        self.dst = set(); self.src = set()
        if self.label or self.empty: return
        parts = t.split(None, 1)
        self.op = parts[0]
        rest = parts[1] if len(parts) > 1 else ""
        ops = []; depth = 0; cur = ""
        for ch in rest:
            if ch == "[": depth += 1
            if ch == "]": depth -= 1
            if ch == "," and depth == 0:
                ops.append(cur); cur = ""
            else: cur += ch
        if cur.strip(): ops.append(cur)
        ops2 = []
        for o in ops:
            o = o.strip()
            ops2.append(o.split()[0] if o else o)
        self.ops = ops2
        op = self.op
        self.is_mfma = op.startswith("v_mfma")
        self.is_valu = op.startswith("v_") and not self.is_mfma
        self.is_dpp = "_dpp" in op or "row_" in t or "quad_perm" in t
        self.is_perml = op.startswith("v_permlane")
        self.is_trans = any(op.startswith(x) for x in TRANS)
        self.is_vmem = op.startswith(("buffer_", "global_", "flat_"))
        self.is_ds = op.startswith("ds_")
        self.is_store = self.is_vmem and ("store" in op or "atomic" in op)
        self.is_salu = op.startswith("s_")
        R = [regs_of(o) for o in ops2]
        if self.is_mfma:
            self.dst = R[0]; self.srcA = R[1]; self.srcB = R[2]; self.srcC = R[3] if len(R) > 3 else set()
            self.src = self.srcA | self.srcB | self.srcC
        elif self.is_valu:
            if op.startswith("v_cmp"):
                self.dst = R[0]; self.src = set().union(*R[1:]) if len(R) > 1 else set()
            elif self.is_perml and "swap" in op:
                self.dst = R[0] | R[1]; self.src = R[0] | R[1]
            elif op.startswith(("v_add_co", "v_sub_co", "v_addc_co", "v_subb_co")):
                self.dst = R[0] | R[1]; self.src = set().union(*R[2:])
            else:
                self.dst = R[0]; self.src = set().union(*R[1:]) if len(R) > 1 else set()
                if op.startswith(("v_fmac", "v_mac", "v_writelane", "v_dot2c")) or (self.is_dpp):
                    self.src |= R[0]
                if op.startswith("v_cndmask") and len(R) == 3: self.src |= {"vcc"}
        elif self.is_vmem:
            if self.is_store:
                self.dst = set(); self.src = set().union(*R)
                self.data = R[0] if op.startswith("buffer_") else R[1]
            else:
                self.dst = R[0]; self.src = set().union(*R[1:])
        elif self.is_ds:
            if op.startswith(("ds_write", "ds_add", "ds_max", "ds_or")):
                self.src = set().union(*R)
            else:
                self.dst = R[0]; self.src = set().union(*R[1:]) if len(R) > 1 else set()
        elif self.is_salu:
            if op.startswith(("s_cmp", "s_cbranch", "s_branch", "s_waitcnt", "s_nop", "s_barrier", "s_endpgm", "s_sleep", "s_setprio", "s_bitcmp")):
                self.src = set().union(*R) if R else set()
            else:
                self.dst = R[0] if R else set(); self.src = set().union(*R[1:]) if len(R) > 1 else set()
                if "saveexec" in op: self.dst = self.dst | {"exec"}; self.src |= {"exec"}

    def states(self):
        if self.label or self.empty: return 0
        if self.op == "s_nop": return int(self.ops[0], 0) + 1
        return 1

def vonly(s): return {r for r in s if r[0] in "va" and r != "vcc"}
def sonly(s): return {r for r in s if r[0] == "s" or r == "vcc"}

def mfma_passes(op):
    if "32x32x16" in op or "32x32x8" in op: return 8
    if "16x16x32" in op or "16x16x16" in op: return 4
    if "16x16x4_f32" in op: return 8
    if "32x32x2_f32" in op: return 16
    if "4x4x4" in op: return 2
    raise ValueError(op)

def need(prod, cons):
    n = 0
    if prod.label or prod.empty or cons.label or cons.empty: return 0
    pv = vonly(prod.dst); ps = sonly(prod.dst)
    cv = vonly(cons.src); cs = sonly(cons.src)
    if prod.is_valu:
        if pv & cv:
            if cons.is_dpp and cons.is_valu: n = max(n, 2)
            if cons.is_perml: n = max(n, 2)
            if cons.is_mfma: n = max(n, 2)
            if cons.op.startswith(("v_readlane", "v_readfirstlane")): n = max(n, 1)
            if prod.is_trans and (cons.is_valu or cons.is_mfma) and not cons.is_trans: n = max(n, 1)
            if prod.is_trans and (cons.is_vmem or cons.is_ds): n = max(n, 1)
        if ps & cs:
            if cons.is_valu:
                n = max(n, 2)
                if cons.op.startswith(("v_readlane", "v_writelane")): n = max(n, 4)
            if cons.is_vmem: n = max(n, 5)
            if cons.is_mfma: n = max(n, 2)
        if ps & cs and cons.is_salu: n = max(n, 1)
    if prod.is_mfma:
        p = mfma_passes(prod.op)
        xdl = "f32_16x16x4_f32" not in prod.op and "32x32x2_f32" not in prod.op
        tblVALU = {2: 5, 4: 8, 8: 12, 16: 20} if xdl else {2: 4, 4: 6, 8: 10, 16: 18}
        tblC = {2: 4, 4: 6, 8: 10, 16: 18}
        if cons.is_mfma:
            if pv & (vonly(cons.srcA) | vonly(cons.srcB)): n = max(n, tblVALU[p])
            if pv & vonly(cons.srcC):
                if pv == vonly(cons.srcC) and mfma_passes(cons.op) == p: n = max(n, 2 if p == 2 else 0)
                else: n = max(n, tblC[p])
            elif pv & vonly(cons.dst):
                n = max(n, tblC[p])
        else:
            if pv & (cv | vonly(cons.dst)): n = max(n, tblVALU[p])
        if cons.is_valu and vonly(prod.srcC) & vonly(cons.dst): n = max(n, {2: 1, 4: 3, 8: 7, 16: 15}[p])
    if prod.is_store and ("x4" in prod.op or "x3" in prod.op):
        if cons.is_valu and prod.data & vonly(cons.dst): n = max(n, 2)
    if prod.is_ds and prod.op.startswith("ds_write") and ("b128" in prod.op or "b96" in prod.op):
        if cons.is_valu and vonly(prod.src) & vonly(cons.dst): n = max(n, 2)
    if prod.is_salu and "m0" in prod.dst and (cons.is_vmem or cons.is_ds): n = max(n, 1)
    return n

class Asm:
    def __init__(self):
        self.lines = []
    def __call__(self, text):
        for l in text.split("\n"):
            if l.strip() == "": continue
            self.lines.append(l if l.rstrip().endswith(":") else "  " + l.strip())
    def label(self, name): self.lines.append(name + ":")
    def finish(self):
        out = []
        nnop = 0
        for l in self.lines:
            ins = Ins(l)
            if not (ins.label or ins.empty):
                req = 0; dist = 0
                for prev in reversed(out):
                    if dist > 24: break
                    r = need(prev, ins)
                    if r > dist: req = max(req, r - dist)
                    dist += prev.states()
                while req > 0:
                    k = min(req, 16)
                    out.append(Ins(f"  s_nop {k-1}")); nnop += 1
                    req -= k
            out.append(ins)
        self.nnop = nnop
        return "\n".join(i.text for i in out) + "\n"
```

```python
import sys
from asmlib import Asm
KNAME = "parallel_sum__sliding_block_cached__glu_gated_geglu__decode_kernel"

WS_E  = 0
WS_QP = 0x10000
WS_GU = 0x20000
WS_ML = 0x30000
WS_AP = 0x40000
WS_OP = 0xC0000
WS_SIZE = 0x20000000
L_XNQ = 0
L_XNF = 1024
L_Q   = 2048
L_AO  = 4096
L_ST  = 12288
L_FL  = 12416
LDS_BYTES = 16384

SPIN_MAX = 1 << 14

class Opt:
    stamps = False
    nt = "nt"

def build(opt):
    a = Asm()
    NT = opt.nt
    def stamp(i):
        if opt.stamps: a(f"s_memrealtime s[{64+2*i}:{65+2*i}]")
    def srd(dst, ptr, size):
        a(f"s_mov_b32 s{dst}, s{ptr}\ns_and_b32 s{dst+1}, s{ptr+1}, 0xffff\ns_mov_b32 s{dst+2}, {size}\ns_mov_b32 s{dst+3}, 0x20000")
    def make_tag():
        a("""s_add_u32 s7, s6, 1
        s_mul_i32 s6, s7, 0x01010101
        s_xor_b32 s6, s6, 0x5c3a96f0
        s_and_b32 s56, s6, 0xffff
        s_and_b32 s57, s6, 0xffff0000
        v_mov_b32 v254, s6""")
    def tag4(regs):
        for k, r in enumerate(regs):
            a(f"v_perm_b32 v{r}, v{r}, v254, s{50+k}")
    def check4(acc, r, tmp, first=False):
        a(f"v_perm_b32 v{tmp}, v{r+1}, v{r}, s54")
        if first: a(f"v_xor_b32 v{acc}, s56, v{tmp}")
        else:     a(f"v_bitop3_b32 v{acc}, v{acc}, v{tmp}, s56 bitop3:0xf6")
        a(f"v_perm_b32 v{tmp+1}, v{r+3}, v{r+2}, s55")
        a(f"v_bitop3_b32 v{acc}, v{acc}, v{tmp+1}, s57 bitop3:0xf6")
    def mask4(r):
        for k in range(4): a(f"v_and_b32 v{r+k}, s58, v{r+k}")
    def wave_sum_to_sgpr(v, s):
        for r in (8, 4, 2, 1):
            a(f"v_add_f32_dpp v{v}, v{v}, v{v} row_ror:{r} row_mask:0xf bank_mask:0xf")
        a(f"v_add_f32_dpp v{v}, v{v}, v{v} row_bcast:15 row_mask:0xa bank_mask:0xf")
        a(f"v_add_f32_dpp v{v}, v{v}, v{v} row_bcast:31 row_mask:0xc bank_mask:0xf")
        a(f"v_readlane_b32 s{s}, v{v}, 63")
    def gemv_tile(R, A, acc, first, B0=160):
        def perms(e, B):
            w = e >> 1; sel = 49 if (e & 1) else 48
            for u in range(4):
                a(f"v_perm_b32 v{B+u}, v{R+(2*u+1)*4+w}, v{R+(2*u)*4+w}, s{sel}")
        perms(0, B0)
        for e in range(8):
            B = B0 + 4*(e & 1)
            if e < 7: perms(e+1, B0 + 4*((e+1) & 1))
            c = "0" if first else f"v[{acc+4*e}:{acc+4*e+3}]"
            a(f"v_mfma_f32_16x16x32_bf16 v[{acc+4*e}:{acc+4*e+3}], v[{A}:{A+3}], v[{B}:{B+3}], {c}")

    a(f"""s_cmp_ge_u32 s2, 256
    s_cbranch_scc1 L_exit""")
    stamp(0)
    a("""s_load_dwordx16 s[8:23], s[0:1], 0
    s_load_dwordx8 s[24:31], s[0:1], 64
    v_lshrrev_b32 v1, 6, v0
    v_and_b32 v0, 63, v0
    v_readfirstlane_b32 s3, v1
    s_and_b32 s4, s2, 7
    s_lshr_b32 s5, s2, 3
    v_lshrrev_b32 v2, 4, v0
    v_and_b32 v3, 15, v0
    s_mov_b32 s48, 0x05040100
    s_mov_b32 s49, 0x07060302
    s_mov_b32 s50, 0x07060500
    s_mov_b32 s51, 0x07060501
    s_mov_b32 s52, 0x07060502
    s_mov_b32 s53, 0x07060503
    s_mov_b32 s54, 0x0c0c0400
    s_mov_b32 s55, 0x04000c0c
    s_mov_b32 s58, 0xffffff00
    s_waitcnt lgkmcnt(0)
    s_load_dword s6, s[30:31], 0""")
    srd(40, 30, WS_SIZE)
    a("""s_cmp_eq_u32 s3, 0
    s_cbranch_scc1 L_roleQ
    s_cmp_eq_u32 s3, 1
    s_cbranch_scc1 L_roleF
    s_cmp_lt_u32 s3, 4
    s_cbranch_scc1 L_roleO
    s_branch L_roleA""")

    def issue_w():
        for tile in range(2):
            for i in range(8):
                r = 64 + (tile*8 + i)*4
                a(f"buffer_load_dwordx4 v[{r}:{r+3}], v50, s[32:35], s36 offen {NT}")
                if tile == 0 and i == 7:
                    a("s_mul_i32 s96, s37, 57\ns_add_u32 s36, s36, s96")
                elif not (tile == 1 and i == 7):
                    a("s_add_u32 s36, s36, s37")
    def x_load():
        srd(44, 8, 1024)
        a("v_lshlrev_b32 v8, 4, v0\nbuffer_load_dwordx4 v[4:7], v8, s[44:47], 0 offen")
    def w_voff():
        a("""v_lshrrev_b32 v50, 3, v0
        v_lshlrev_b32 v50, 3, v50
        v_mul_lo_u32 v50, v50, s37
        v_and_b32 v10, 7, v0
        v_lshl_add_u32 v50, v10, 4, v50""")
    def layernorm(lds_xn):
        for k in range(4):
            a(f"v_lshlrev_b32 v{16+2*k}, 16, v{4+k}\nv_and_b32 v{17+2*k}, 0xffff0000, v{4+k}")
        a("""v_add_f32 v24, v16, v17
        v_add_f32 v25, v18, v19
        v_add_f32 v26, v20, v21
        v_add_f32 v27, v22, v23
        v_add_f32 v24, v24, v25
        v_add_f32 v26, v26, v27
        v_add_f32 v24, v24, v26""")
        wave_sum_to_sgpr(24, 60)
        a("v_mov_b32 v25, 0x3b000000\nv_mul_f32 v25, s60, v25")
        for k in range(8): a(f"v_sub_f32 v{32+k}, v{16+k}, v25")
        a("v_mul_f32 v24, v32, v32")
        for k in range(1, 8): a(f"v_fmac_f32 v24, v{32+k}, v{32+k}")
        wave_sum_to_sgpr(24, 61)
        a("""v_mov_b32 v26, 0x3b000000
        v_mul_f32 v26, s61, v26
        v_cvt_pk_bf16_f32 v28, v25, v26
        v_lshlrev_b32 v29, 16, v28
        v_and_b32 v30, 0xffff0000, v28
        v_add_f32 v30, 0x3727c5ac, v30
        v_cvt_pk_bf16_f32 v30, v30, v30
        v_and_b32 v30, 0xffff0000, v30
        v_sqrt_f32 v30, v30
        v_cvt_pk_bf16_f32 v30, v30, v30
        v_and_b32 v30, 0xffff0000, v30
        v_rcp_f32 v30, v30""")
        for k in range(8): a(f"v_sub_f32 v{32+k}, v{16+k}, v29")
        for k in range(4): a(f"v_cvt_pk_bf16_f32 v{40+k}, v{32+2*k}, v{33+2*k}")
        for k in range(4):
            a(f"v_lshlrev_b32 v{32+2*k}, 16, v{40+k}\nv_and_b32 v{33+2*k}, 0xffff0000, v{40+k}")
        for k in range(8): a(f"v_mul_f32 v{32+k}, v{32+k}, v30")
        for k in range(4): a(f"v_cvt_pk_bf16_f32 v{40+k}, v{32+2*k}, v{33+2*k}")
        a(f"v_lshlrev_b32 v16, 4, v0\nds_write_b128 v16, v[40:43] offset:{lds_xn}")
        a(f"""v_and_b32 v17, 1, v3
        v_lshlrev_b32 v17, 4, v17
        v_lshl_add_u32 v17, v2, 5, v17
        v_add_u32 v17, s38, v17
        ds_read_b128 v[8:11], v17 offset:{lds_xn}
        ds_read_b128 v[12:15], v17 offset:{lds_xn+128}""")
    def gemv_in_and_publish(first_wait):
        a(f"s_waitcnt vmcnt(8) lgkmcnt(0)")
        gemv_tile(64, 8, 128, True)
        a("s_waitcnt vmcnt(0)")
        gemv_tile(96, 12, 128, False)
        a("v_and_b32 v16, 8, v0\nv_cmp_ne_u32 s[62:63], 0, v16")
        for k in range(4):
            a(f"v_cndmask_b32 v{20+k}, v{128+4*k}, v{128+4*(4+k)+1}, s[62:63]")
            a(f"v_cndmask_b32 v{24+k}, v{128+4*(4+k)}, v{128+4*k+1}, s[62:63]")
        for k in range(4):
            a(f"v_add_f32_dpp v{20+k}, v{24+k}, v{20+k} row_ror:8 row_mask:0xf bank_mask:0xf")
        tag4([20, 21, 22, 23])
        a("""v_and_b32 v17, 7, v0
        v_lshlrev_b32 v17, 5, v17
        v_lshl_add_u32 v17, v16, 1, v17
        s_mov_b32 exec_lo, 0xffff
        s_mov_b32 exec_hi, 0
        buffer_store_dwordx4 v[20:23], v17, s[40:43], s39 offen sc1
        s_mov_b64 exec, -1""")

    a.label("L_roleQ")
    a("s_setprio 3")
    srd(32, 14, 4194304)
    a(f"""s_and_b32 s96, s5, 7
    s_lshr_b32 s97, s5, 3
    s_lshl_b32 s36, s97, 20
    s_lshl_b32 s98, s4, 10
    s_add_u32 s36, s36, s98
    s_lshl_b32 s98, s96, 7
    s_add_u32 s36, s36, s98
    s_mov_b32 s37, 8192
    s_lshl_b32 s38, s97, 8
    s_lshl_b32 s39, s4, 13
    s_lshl_b32 s98, s97, 11
    s_add_u32 s39, s39, s98
    s_lshl_b32 s98, s96, 8
    s_add_u32 s39, s39, s98
    s_add_u32 s39, s39, {WS_QP}""")
    x_load()
    w_voff()
    issue_w()
    a(f"v_mov_b32 v16, 0\nv_lshlrev_b32 v17, 2, v0\ns_mov_b32 exec_lo, 0xffff\ns_mov_b32 exec_hi, 0\nds_write_b32 v17, v16 offset:{L_FL}\ns_mov_b64 exec, -1")
    stamp(1)
    a("s_waitcnt vmcnt(16) lgkmcnt(0)")
    make_tag()
    layernorm(L_XNQ)
    stamp(2)
    gemv_in_and_publish(True)
    stamp(3)
    a("s_barrier")
    a("s_waitcnt vmcnt(0)")
    a(f"""s_lshl_b32 s96, s4, 13
    s_add_u32 s96, s96, {WS_QP}
    s_add_u32 s97, s96, 4096
    v_lshlrev_b32 v8, 4, v0
    s_mov_b32 s59, 0""")
    first = True
    def q_gather():
        for i in range(8):
            so = "s96" if i < 4 else "s97"
            a(f"buffer_load_dwordx4 v[{64+4*i}:{67+4*i}], v8, s[40:43], {so} offen offset:{(i&3)*1024} sc1")
    q_gather()
    stamp(4)
    a("s_barrier")
    a.label("L_qchk")
    a("s_waitcnt vmcnt(0)")
    for i in range(8): check4(16, 64+4*i, 18, first=(i == 0))
    a(f"""v_cmp_ne_u32 vcc, 0, v16
    s_add_u32 s59, s59, 1
    s_cbranch_vccz L_qok
    s_cmp_gt_u32 s59, {SPIN_MAX}
    s_cbranch_scc1 L_qok""")
    q_gather()
    a("s_branch L_qchk")
    a.label("L_qok")
    stamp(5)
    for i in range(8): mask4(64+4*i)
    for half in range(2):
        for k in range(4):
            r0 = 64 + 4*half + k
            a(f"v_add_f32 v{r0}, v{r0}, v{r0+8}\nv_add_f32 v{r0+16}, v{r0+16}, v{r0+24}\nv_add_f32 v{r0}, v{r0}, v{r0+16}")
        a(f"v_cvt_pk_bf16_f32 v{20+2*half}, v{64+4*half}, v{65+4*half}\nv_cvt_pk_bf16_f32 v{21+2*half}, v{66+4*half}, v{67+4*half}")
    a(f"""v_lshlrev_b32 v17, 3, v0
    ds_write_b64 v17, v[20:21] offset:{L_Q}
    ds_write_b64 v17, v[22:23] offset:{L_Q+512}
    v_mov_b32 v18, 1
    v_mov_b32 v19, 0
    ds_write_b32 v19, v18 offset:{L_FL}
    s_waitcnt lgkmcnt(0)""")
    stamp(6)
    a("s_branch L_end")

    a.label("L_roleF")
    a(f"""s_lshr_b32 s96, s2, 1
    s_mul_i32 s97, s96, 2341
    s_lshr_b32 s97, s97, 16
    s_mul_i32 s98, s97, 28
    s_sub_u32 s96, s96, s98
    s_and_b32 s98, s2, 1
    s_cmp_eq_u32 s98, 0
    s_cselect_b32 s100, s20, s22
    s_cselect_b32 s101, s21, s23""")
    srd(32, 100, 1835008)
    a(f"""s_mul_i32 s36, s97, {128*3584}
    s_lshl_b32 s99, s96, 7
    s_add_u32 s36, s36, s99
    s_mov_b32 s37, 3584
    s_lshl_b32 s38, s97, 8
    s_mul_i32 s39, s98, 28672
    s_mul_i32 s99, s97, 7168
    s_add_u32 s39, s39, s99
    s_lshl_b32 s99, s96, 8
    s_add_u32 s39, s39, s99
    s_add_u32 s39, s39, {WS_GU}""")
    x_load()
    w_voff()
    a("s_waitcnt vmcnt(0) lgkmcnt(0)")
    make_tag()
    layernorm(L_XNF)
    a("s_waitcnt lgkmcnt(0)")
    stamp(1)
    a("s_barrier\ns_barrier")
    a("s_cmp_ge_u32 s2, 224\ns_cbranch_scc1 L_end")
    issue_w()
    stamp(2)
    gemv_in_and_publish(False)
    stamp(3)
    a("s_branch L_end")

    a.label("L_roleA")
    a("s_setprio 2")
    srd(32, 10, 134217728)
    srd(36, 12, 134217728)
    a(f"""s_sub_u32 s3, s3, 4
    s_lshl_b32 s96, s4, 24
    s_lshl_b32 s97, s5, 15
    s_add_u32 s96, s96, s97
    s_lshl_b32 s97, s3, 13
    s_add_u32 s96, s96, s97
    s_add_u32 s96, s96, {61440*256}
    s_add_u32 s97, s96, 4096
    v_lshlrev_b32 v8, 8, v3
    v_lshl_add_u32 v8, v2, 4, v8
    v_lshlrev_b32 v9, 10, v2
    v_lshl_add_u32 v9, v3, 4, v9""")
    for T in range(2):
        for t in range(4):
            r = 64 + (T*4 + t)*4
            a(f"buffer_load_dwordx4 v[{r}:{r+3}], v8, s[32:35], s{96+T} offen offset:{t*64} {NT}")
    stamp(1)
    a("s_barrier")
    for i in range(8):
        r = 96 + i*4
        a(f"buffer_load_dwordx4 v[{r}:{r+3}], v9, s[36:39], s{96+(i>>2)} offen offset:{(i&3)*256} {NT}")
    a("s_waitcnt lgkmcnt(0)")
    make_tag()
    stamp(2)
    a("s_barrier")
    a(f"v_mov_b32 v10, 0\ns_mov_b32 s59, 0")
    a.label("L_await_q")
    a(f"""ds_read_b32 v11, v10 offset:{L_FL}
    s_add_u32 s59, s59, 1
    s_waitcnt lgkmcnt(0)
    v_readfirstlane_b32 s60, v11
    s_cmp_gt_u32 s59, {SPIN_MAX*16}
    s_cbranch_scc1 L_qready
    s_cmp_eq_u32 s60, 0
    s_cbranch_scc0 L_qready
    s_sleep 1
    s_branch L_await_q""")
    a.label("L_qready")
    stamp(3)
    a(f"""v_lshrrev_b32 v10, 2, v3
    v_lshlrev_b32 v10, 8, v10
    v_lshl_add_u32 v10, v2, 4, v10""")
    for t in range(4):
        a(f"ds_read_b128 v[{16+4*t}:{19+4*t}], v10 offset:{L_Q + t*64}")
    a("s_waitcnt vmcnt(8) lgkmcnt(0)")
    for t in range(4):
        for T in range(2):
            c = "0" if t == 0 else f"v[{32+4*T}:{35+4*T}]"
            a(f"v_mfma_f32_16x16x32_bf16 v[{32+4*T}:{35+4*T}], v[{64+(T*4+t)*4}:{67+(T*4+t)*4}], v[{16+4*t}:{19+4*t}], {c}")
    for k in range(4): a(f"v_cvt_pk_bf16_f32 v{40+k}, v{32+2*k}, v{33+2*k}")
    for k in range(4): a(f"v_lshlrev_b32 v{32+2*k}, 16, v{40+k}\nv_and_b32 v{33+2*k}, 0xffff0000, v{40+k}")
    a("s_mov_b32 s60, 0x3db504f3")
    for k in range(8): a(f"v_mul_f32 v{32+k}, s60, v{32+k}")
    for k in range(4): a(f"v_cvt_pk_bf16_f32 v{40+k}, v{32+2*k}, v{33+2*k}")
    for k in range(4): a(f"v_lshlrev_b32 v{32+2*k}, 16, v{40+k}\nv_and_b32 v{33+2*k}, 0xffff0000, v{40+k}")
    a("""v_max3_f32 v44, v32, v33, v34
    v_max3_f32 v45, v35, v36, v37
    v_max3_f32 v44, v44, v38, v39
    v_max_f32 v44, v44, v45
    v_mov_b32 v45, v44
    v_permlane16_swap_b32 v44, v45
    v_max_f32 v44, v44, v45
    v_mov_b32 v45, v44
    v_permlane32_swap_b32 v44, v45
    v_max_f32 v44, v44, v45
    s_mov_b32 s60, 0x3fb8aa3b
    v_mul_f32 v46, s60, v44""")
    for k in range(8): a(f"v_fma_f32 v{32+k}, v{32+k}, s60, -v46")
    for k in range(8): a(f"v_exp_f32 v{32+k}, v{32+k}")
    a("""v_add_f32 v45, v32, v33
    v_add_f32 v46, v34, v35
    v_add_f32 v47, v36, v37
    v_add_f32 v48, v38, v39
    v_add_f32 v45, v45, v46
    v_add_f32 v47, v47, v48
    v_add_f32 v45, v45, v47
    v_mov_b32 v46, v45
    v_permlane16_swap_b32 v45, v46
    v_add_f32 v45, v45, v46
    v_mov_b32 v46, v45
    v_permlane32_swap_b32 v45, v46
    v_add_f32 v45, v45, v46""")
    for k in range(4): a(f"v_cvt_pk_bf16_f32 v{40+k}, v{32+2*k}, v{33+2*k}")
    stamp(4)
    a("s_waitcnt vmcnt(0)")
    stamp(5)
    gemv_tile(96, 40, 128, True)
    for e in range(8): a(f"v_mov_b32 v{16+e}, v{128+4*e}")
    a(f"""s_lshl_b32 s60, s3, 11
    v_lshlrev_b32 v10, 9, v2
    v_lshl_add_u32 v10, v3, 5, v10
    v_add_u32 v10, s60, v10
    ds_write_b128 v10, v[16:19] offset:{L_AO}
    ds_write_b128 v10, v[20:23] offset:{L_AO+16}
    s_lshl_b32 s60, s3, 3
    v_lshrrev_b32 v11, 2, v3
    v_lshlrev_b32 v11, 5, v11
    v_add_u32 v11, s60, v11
    s_mov_b32 exec_lo, 0x1111
    s_mov_b32 exec_hi, 0
    ds_write_b64 v11, v[44:45] offset:{L_ST}
    s_mov_b64 exec, 1
    s_lshl_b32 s60, s3, 2
    v_mov_b32 v11, s60
    v_mov_b32 v12, 1
    ds_write_b32 v11, v12 offset:{L_FL+16}
    s_mov_b64 exec, -1
    v_mov_b32 v10, 0
    s_mov_b32 s59, 0""")
    a.label("L_await_a")
    a(f"""ds_read_b128 v[12:15], v10 offset:{L_FL+16}
    s_add_u32 s59, s59, 1
    s_waitcnt lgkmcnt(0)
    v_and_b32 v12, v12, v13
    v_and_b32 v14, v14, v15
    v_and_b32 v12, v12, v14
    s_nop 0
    v_readfirstlane_b32 s60, v12
    s_cmp_gt_u32 s59, {SPIN_MAX*16}
    s_cbranch_scc1 L_aready
    s_cmp_eq_u32 s60, 0
    s_cbranch_scc1 L_await_a""")
    a.label("L_aready")
    stamp(6)
    a(f"""s_lshl_b32 s60, s3, 9
    v_and_b32 v10, 31, v0
    v_lshlrev_b32 v10, 4, v10
    v_add_u32 v10, s60, v10
    s_lshl_b32 s60, s3, 5
    v_mov_b32 v11, s60""")
    for w in range(4): a(f"ds_read_b128 v[{16+4*w}:{19+4*w}], v10 offset:{L_AO + w*2048}")
    a(f"ds_read_b128 v[32:35], v11 offset:{L_ST}\nds_read_b128 v[36:39], v11 offset:{L_ST+16}")
    a("""s_waitcnt lgkmcnt(0)
    v_max3_f32 v40, v32, v34, v36
    v_max_f32 v40, v40, v38
    s_mov_b32 s60, 0x3fb8aa3b
    v_sub_f32 v32, v32, v40
    v_sub_f32 v34, v34, v40
    v_sub_f32 v36, v36, v40
    v_sub_f32 v38, v38, v40
    v_mul_f32 v32, s60, v32
    v_mul_f32 v34, s60, v34
    v_mul_f32 v36, s60, v36
    v_mul_f32 v38, s60, v38
    v_exp_f32 v32, v32
    v_exp_f32 v34, v34
    v_exp_f32 v36, v36
    v_exp_f32 v38, v38
    v_mul_f32 v41, v32, v33
    v_fmac_f32 v41, v34, v35
    v_fmac_f32 v41, v36, v37
    v_fmac_f32 v41, v38, v39""")
    for k in range(4):
        a(f"v_mul_f32 v{44+k}, v32, v{16+k}\nv_fmac_f32 v{44+k}, v34, v{20+k}\nv_fmac_f32 v{44+k}, v36, v{24+k}\nv_fmac_f32 v{44+k}, v38, v{28+k}")
    a(f"""v_cmp_eq_u32 vcc, 32, v0
    v_mov_b32 v42, 0
    v_cndmask_b32 v44, v44, v40, vcc
    v_cndmask_b32 v45, v45, v41, vcc
    v_cndmask_b32 v46, v46, v42, vcc
    v_cndmask_b32 v47, v47, v42, vcc""")
    tag4([44, 45, 46, 47])
    a(f"""s_lshl_b32 s60, s4, 16
    s_lshl_b32 s61, s5, 11
    s_add_u32 s60, s60, s61
    s_lshl_b32 s61, s3, 9
    s_add_u32 s60, s60, s61
    s_add_u32 s60, s60, {WS_AP}
    v_lshlrev_b32 v10, 4, v0
    v_add_u32 v10, s60, v10
    s_lshl_b32 s60, s4, 2
    s_add_u32 s60, s60, s3
    s_lshl_b32 s60, s60, 9
    s_lshl_b32 s61, s5, 4
    s_add_u32 s60, s60, s61
    s_add_u32 s60, s60, {WS_ML}
    v_mov_b32 v11, s60
    v_cndmask_b32 v10, v10, v11, vcc
    s_mov_b32 exec_lo, -1
    s_mov_b32 exec_hi, 1
    buffer_store_dwordx4 v[44:47], v10, s[40:43], 0 offen sc1
    s_mov_b64 exec, -1""")
    stamp(7)
    a("s_branch L_end")

    a.label("L_roleO")
    a(f"""s_sub_u32 s3, s3, 2
    s_lshr_b32 s96, s5, 2
    s_and_b32 s97, s5, 3""")
    srd(32, 16, 4194304)
    srd(36, 24, 1835008)
    a(f"""s_lshl_b32 s98, s4, 19
    s_lshl_b32 s99, s96, 16
    s_add_u32 s98, s98, s99
    s_lshl_b32 s99, s3, 15
    s_add_u32 s98, s98, s99
    s_lshl_b32 s99, s97, 8
    s_add_u32 s98, s98, s99
    s_add_u32 s99, s98, 4096
    v_lshlrev_b32 v8, 13, v2
    v_lshl_add_u32 v8, v3, 4, v8
    s_lshl_b32 s100, s4, 3
    s_add_u32 s100, s100, s96
    s_waitcnt lgkmcnt(0)""")
    make_tag()
    a("""s_cmp_lt_u32 s100, 56
    s_cselect_b32 s101, 1, 0
    s_cmp_eq_u32 s3, 0
    s_cselect_b32 s101, s101, 0""")
    stamp(1)
    a("s_barrier\ns_barrier")
    for i in range(8):
        a(f"buffer_load_dwordx4 v[{64+4*i}:{67+4*i}], v8, s[32:35], s{98+(i>>2)} offen offset:{(i&3)*1024} {NT}")
    a("s_cmp_eq_u32 s101, 0\ns_cbranch_scc1 L_nodown1")
    a("""s_lshl_b32 s98, s100, 15
    s_lshl_b32 s99, s97, 8
    s_add_u32 s98, s98, s99
    s_add_u32 s99, s98, 4096""")
    for i in range(8):
        a(f"buffer_load_dwordx4 v[{96+4*i}:{99+4*i}], v8, s[36:39], s{98+(i>>2)} offen offset:{(i&3)*1024} {NT}")
    a.label("L_nodown1")
    stamp(2)
    a(f"""s_lshl_b32 s60, s4, 16
    s_lshr_b32 s61, s96, 1
    s_lshl_b32 s98, s61, 9
    s_add_u32 s60, s60, s98
    s_and_b32 s98, s96, 1
    s_lshl_b32 s98, s98, 8
    s_add_u32 s60, s60, s98
    s_lshl_b32 s98, s3, 7
    s_add_u32 s60, s60, s98
    s_add_u32 s60, s60, {WS_AP}
    s_add_u32 s98, s60, 32768
    v_lshlrev_b32 v9, 11, v3
    v_lshl_add_u32 v9, v2, 5, v9
    s_lshl_b32 s99, s4, 2
    s_add_u32 s99, s99, s61
    s_lshl_b32 s99, s99, 9
    s_add_u32 s99, s99, {WS_ML}
    v_lshlrev_b32 v10, 4, v3""")
    a(f"""v_lshrrev_b32 v11, 3, v3
    v_mul_u32_u24 v11, 28672, v11
    v_and_b32 v12, 3, v3
    v_mul_u32_u24 v12, 7168, v12
    v_add_u32 v11, v11, v12
    v_and_b32 v12, 4, v3
    v_lshl_add_u32 v11, v12, 2, v11
    v_lshl_add_u32 v11, v2, 5, v11
    s_lshl_b32 s61, s100, 7
    s_add_u32 s61, s61, {WS_GU}
    s_mov_b32 s59, 0""")
    a.label("L_opoll")
    a("""buffer_load_dwordx4 v[16:19], v9, s[40:43], s60 offen sc1
    buffer_load_dwordx4 v[20:23], v9, s[40:43], s60 offen offset:16 sc1
    buffer_load_dwordx4 v[24:27], v9, s[40:43], s98 offen sc1
    buffer_load_dwordx4 v[28:31], v9, s[40:43], s98 offen offset:16 sc1
    buffer_load_dwordx4 v[32:35], v10, s[40:43], s99 offen sc1
    buffer_load_dwordx4 v[36:39], v10, s[40:43], s99 offen offset:256 sc1
    s_cmp_eq_u32 s101, 0
    s_cbranch_scc1 L_nogu1
    buffer_load_dwordx4 v[40:43], v11, s[40:43], s61 offen sc1""")
    a.label("L_nogu1")
    a("s_waitcnt vmcnt(0)")
    for i in range(6): check4(12, 16+4*i, 14, first=(i == 0))
    a("s_cmp_eq_u32 s101, 0\ns_cbranch_scc1 L_nogu2")
    check4(12, 40, 14)
    a.label("L_nogu2")
    a(f"""v_cmp_ne_u32 vcc, 0, v12
    s_add_u32 s59, s59, 1
    s_cbranch_vccz L_ook
    s_cmp_gt_u32 s59, {SPIN_MAX}
    s_cbranch_scc0 L_opoll""")
    a.label("L_ook")
    stamp(3)
    for i in range(7): mask4(16+4*i)
    a("v_max_f32 v44, v32, v36")
    for r in (8, 4, 2, 1): a(f"v_max_f32_dpp v44, v44, v44 row_ror:{r} row_mask:0xf bank_mask:0xf")
    a("""s_mov_b32 s60, 0x3fb8aa3b
    v_sub_f32 v32, v32, v44
    v_sub_f32 v36, v36, v44
    v_mul_f32 v32, s60, v32
    v_mul_f32 v36, s60, v36
    v_exp_f32 v32, v32
    v_exp_f32 v36, v36
    s_nop 0
    v_mul_f32 v45, v32, v33
    v_fmac_f32 v45, v36, v37""")
    for r in (8, 4, 2, 1): a(f"v_add_f32_dpp v45, v45, v45 row_ror:{r} row_mask:0xf bank_mask:0xf")
    for k in range(8):
        a(f"v_mul_f32 v{16+k}, v32, v{16+k}\nv_fmac_f32 v{16+k}, v36, v{24+k}")
    a("v_rcp_f32 v45, v45")
    for r in (8, 4, 2, 1):
        for k in range(8): a(f"v_add_f32_dpp v{16+k}, v{16+k}, v{16+k} row_ror:{r} row_mask:0xf bank_mask:0xf")
    for k in range(8): a(f"v_mul_f32 v{16+k}, v{16+k}, v45")
    for k in range(4): a(f"v_cvt_pk_bf16_f32 v{24+k}, v{16+2*k}, v{17+2*k}")
    stamp(4)
    gemv_tile(64, 24, 128, True)
    a("s_cmp_eq_u32 s101, 0\ns_cbranch_scc1 L_nodown2")
    for q in ("[1,0,3,2]", "[2,3,0,1]"):
        for k in range(4): a(f"v_add_f32_dpp v{40+k}, v{40+k}, v{40+k} quad_perm:{q} row_mask:0xf bank_mask:0xf")
    a("v_cvt_pk_bf16_f32 v44, v40, v41\nv_cvt_pk_bf16_f32 v45, v42, v43")
    a("v_lshlrev_b32 v40, 16, v44\nv_and_b32 v41, 0xffff0000, v44\nv_lshlrev_b32 v42, 16, v45\nv_and_b32 v43, 0xffff0000, v45")
    for k in range(4): a(f"v_mov_b32_dpp v{44+k}, v{40+k} row_ror:8 row_mask:0xf bank_mask:0xf")
    a("v_and_b32 v12, 8, v0\nv_cmp_ne_u32 s[62:63], 0, v12")
    for k in range(4):
        a(f"v_cndmask_b32 v{48+k}, v{40+k}, v{44+k}, s[62:63]")
        a(f"v_cndmask_b32 v{52+k}, v{44+k}, v{40+k}, s[62:63]")
    a("s_mov_b32 s60, 0x3d372713\ns_mov_b32 s61, 0xc0135761")
    for k in range(4):
        a(f"""v_mul_f32 v{40+k}, v{48+k}, v{48+k}
        v_fma_f32 v{40+k}, v{40+k}, s60, 1.0
        v_mul_f32 v{40+k}, v{40+k}, v{48+k}
        v_mul_f32 v{40+k}, s61, v{40+k}
        v_exp_f32 v{40+k}, v{40+k}
        v_add_f32 v{40+k}, 1.0, v{40+k}
        v_rcp_f32 v{40+k}, v{40+k}
        v_mul_f32 v{40+k}, v{40+k}, v{48+k}""")
    a("v_cvt_pk_bf16_f32 v44, v40, v41\nv_cvt_pk_bf16_f32 v45, v42, v43")
    a("v_lshlrev_b32 v40, 16, v44\nv_and_b32 v41, 0xffff0000, v44\nv_lshlrev_b32 v42, 16, v45\nv_and_b32 v43, 0xffff0000, v45")
    for k in range(4): a(f"v_mul_f32 v{40+k}, v{40+k}, v{52+k}")
    a("v_cvt_pk_bf16_f32 v44, v40, v41\nv_cvt_pk_bf16_f32 v45, v42, v43")
    a("v_mov_b32_dpp v46, v44 row_ror:4 row_mask:0xf bank_mask:0xf\nv_mov_b32_dpp v47, v45 row_ror:4 row_mask:0xf bank_mask:0xf")
    a("v_and_b32 v12, 4, v0\nv_cmp_ne_u32 s[62:63], 0, v12")
    a("""v_cndmask_b32 v24, v44, v46, s[62:63]
    v_cndmask_b32 v25, v45, v47, s[62:63]
    v_cndmask_b32 v26, v46, v44, s[62:63]
    v_cndmask_b32 v27, v47, v45, s[62:63]""")
    gemv_tile(96, 24, 128, False)
    a.label("L_nodown2")
    a("s_nop 7")
    a("v_and_b32 v12, 16, v0\nv_cmp_ne_u32 s[62:63], 0, v12")
    for k in range(4): a(f"v_cndmask_b32 v{16+k}, v{128+4*k}, v{128+4*(4+k)}, s[62:63]")
    tag4([16, 17, 18, 19])
    a(f"""s_lshl_b32 s60, s100, 1
    s_add_u32 s60, s60, s3
    s_lshl_b32 s60, s60, 11
    s_lshl_b32 s61, s97, 9
    s_add_u32 s60, s60, s61
    s_add_u32 s60, s60, {WS_OP}
    v_lshlrev_b32 v12, 5, v3
    v_lshl_add_u32 v12, v2, 4, v12
    s_mov_b32 exec_lo, -1
    s_mov_b32 exec_hi, 0
    buffer_store_dwordx4 v[16:19], v12, s[40:43], s60 offen sc1
    s_mov_b64 exec, -1""")
    stamp(5)
    a("""s_cmp_eq_u32 s3, 0
    s_cbranch_scc0 L_end
    s_cmp_lt_u32 s2, 128
    s_cbranch_scc0 L_end""")
    srd(44, 8, 1024)
    a(f"""s_lshl_b32 s60, s4, 4
    s_add_u32 s60, s60, s5
    s_lshl_b32 s61, s60, 3
    v_mov_b32 v13, s61
    buffer_load_dwordx2 v[24:25], v13, s[44:47], 0 offen
    s_lshl_b32 s61, s60, 4
    s_add_u32 s61, s61, {WS_OP}
    s_add_u32 s98, s61, {64*2048}
    v_lshlrev_b32 v12, 11, v0
    s_mov_b32 s59, 0""")
    a.label("L_fpoll")
    a("""buffer_load_dwordx4 v[16:19], v12, s[40:43], s61 offen sc1
    buffer_load_dwordx4 v[20:23], v12, s[40:43], s98 offen sc1
    s_waitcnt vmcnt(0)""")
    check4(14, 16, 26, first=True)
    check4(14, 20, 26)
    a(f"""v_cmp_ne_u32 vcc, 0, v14
    s_add_u32 s59, s59, 1
    s_cbranch_vccz L_fok
    s_cmp_gt_u32 s59, {SPIN_MAX}
    s_cbranch_scc0 L_fpoll""")
    a.label("L_fok")
    stamp(6)
    mask4(16); mask4(20)
    for k in range(4): a(f"v_add_f32 v{16+k}, v{16+k}, v{20+k}")
    for r in (8, 4, 2, 1):
        for k in range(4): a(f"v_add_f32_dpp v{16+k}, v{16+k}, v{16+k} row_ror:{r} row_mask:0xf bank_mask:0xf")
    for k in range(4): a(f"v_add_f32_dpp v{16+k}, v{16+k}, v{16+k} row_bcast:15 row_mask:0xa bank_mask:0xf")
    for k in range(4): a(f"v_add_f32_dpp v{16+k}, v{16+k}, v{16+k} row_bcast:31 row_mask:0xc bank_mask:0xf")
    a("""v_lshlrev_b32 v20, 16, v24
    v_and_b32 v21, 0xffff0000, v24
    v_lshlrev_b32 v22, 16, v25
    v_and_b32 v23, 0xffff0000, v25""")
    for k in range(4): a(f"v_add_f32 v{16+k}, v{16+k}, v{20+k}")
    a("v_cvt_pk_bf16_f32 v16, v16, v17\nv_cvt_pk_bf16_f32 v17, v18, v19")
    srd(44, 26, 1024)
    a("""s_mov_b32 exec_lo, 0
    s_mov_b32 exec_hi, 0x80000000
    buffer_store_dwordx2 v[16:17], v13, s[44:47], 0 offen
    s_cmp_eq_u32 s2, 0
    s_cbranch_scc0 L_noepoch
    v_mov_b32 v18, s7
    v_mov_b32 v19, 0
    buffer_store_dword v18, v19, s[40:43], 0 offen sc1""")
    a.label("L_noepoch")
    a("s_mov_b64 exec, -1")
    stamp(7)
    a.label("L_end")
    if opt.stamps:
        a("""s_waitcnt lgkmcnt(0)
        v_lshrrev_b32 v1, 6, v0""")
        a("""s_lshl_b32 s96, s2, 4
        s_add_u32 s96, s96, s94
        s_lshl_b32 s96, s96, 7
        s_add_u32 s96, s96, 0x4000000
        s_add_u32 s98, s30, s96
        s_addc_u32 s99, s31, 0
        s_mov_b64 exec, 1
        v_mov_b32 v4, 0""")
        for i in range(8):
            a(f"v_mov_b32 v2, s{64+2*i}\nv_mov_b32 v3, s{65+2*i}\nglobal_store_dwordx2 v4, v[2:3], s[98:99] offset:{8*i}\ns_nop 1")
        a("v_mov_b32 v2, 0x54414D50\nv_mov_b32 v3, 0x53\nglobal_store_dwordx2 v4, v[2:3], s[98:99] offset:120\ns_waitcnt vmcnt(0)")
    a.label("L_exit")
    a("s_endpgm")
    body = a.finish()
    if opt.stamps:
        init = "  s_mov_b32 s94, s3\n" + "".join(f"  s_mov_b64 s[{64+2*i}:{65+2*i}], 0\n" for i in range(1, 8))
        body = body.replace("  s_and_b32 s4, s2, 7\n", init + "  s_and_b32 s4, s2, 7\n", 1)
    hdr = f"""; Fused decode step: LayerNorm -> (GQA sliding-window attention + GEGLU FFN) -> residual sum.
; @launch grid=(256,1,1) block=(512,1,1) lds={LDS_BYTES}
.amdgcn_target "amdgcn-amd-amdhsa--gfx950"
.text
.globl {KNAME}
.p2align 8
.type {KNAME},@function
{KNAME}:
"""
    ftr = f""".section .rodata,"a"
.p2align 6
.amdhsa_kernel {KNAME}
  .amdhsa_next_free_vgpr 256
  .amdhsa_next_free_sgpr 102
  .amdhsa_accum_offset 256
  .amdhsa_group_segment_fixed_size 0
  .amdhsa_kernarg_size 96
  .amdhsa_user_sgpr_count 2
  .amdhsa_user_sgpr_kernarg_segment_ptr 1
  .amdhsa_system_sgpr_workgroup_id_x 1
  .amdhsa_float_denorm_mode_32 3
.end_amdhsa_kernel
"""
    return hdr + body + ftr, a.nnop

if __name__ == "__main__":
    import argparse
    ap = argparse.ArgumentParser()
    ap.add_argument("-o", default="out.s")
    ap.add_argument("--stamps", action="store_true")
    ap.add_argument("--nt", default="nt")
    args = ap.parse_args()
    o = Opt(); o.stamps = args.stamps; o.nt = args.nt
    text, nn = build(o)
    open(args.o, "w").write(text)
    print("wrote", args.o, "nops inserted:", nn, "lines:", text.count("\n"))
```

```python
import sys
from asmlib import Asm
KNAME = "parallel_sum__sliding_block_cached__glu_gated_geglu__decode_kernel"

WS_E  = 0
WS_QP = 0x10000
WS_GU = 0x20000
WS_ML = 0x30000
WS_AP = 0x40000
WS_OP = 0xC0000
WS_SLOW = 0x200000
WS_SIZE = 0x20000000
L_XNQ = 0
L_XNF = 1024
L_Q   = 2048
L_AO  = 4096
L_ST  = 12288
L_FL  = 12416
LDS_BYTES = 16384
SPIN_MAX = 1 << 14
NFAST = 48
NSTAMP = 15

class Opt:
    stamps = False
    nt = "nt"
    kv = 2
    sleep = 1
    fast = True
    endwait = False
    dbgcnt = False

def build(opt):
    a = Asm()
    NT = opt.nt
    def stamp(i):
        if opt.stamps: a(f"s_memrealtime s[{64+2*i}:{65+2*i}]")
    def count_stamp():
        if opt.stamps: a("s_mov_b32 s92, s59\ns_mov_b32 s93, 0")
    def srd(dst, ptr, size):
        a(f"s_mov_b32 s{dst}, s{ptr}\ns_and_b32 s{dst+1}, s{ptr+1}, 0xffff\ns_mov_b32 s{dst+2}, {size}\ns_mov_b32 s{dst+3}, 0x20000")
    def exec_set(lo, hi):
        a(f"s_mov_b32 exec_lo, {lo}\ns_mov_b32 exec_hi, {hi}")
    def make_tag():
        a("""s_add_u32 s7, s6, 1
        s_mul_i32 s6, s7, 0x01010101
        s_xor_b32 s6, s6, 0x5c3a96f0
        s_and_b32 s56, s6, 0xffff
        s_and_b32 s57, s6, 0xffff0000
        v_mov_b32 v254, s6""")
    def tag4(regs):
        for k, r in enumerate(regs):
            a(f"v_perm_b32 v{r}, v{r}, v254, s{50+k}")
    def check4(acc, r, tmp, first=False):
        a(f"v_perm_b32 v{tmp}, v{r+1}, v{r}, s54")
        a(f"v_perm_b32 v{tmp+1}, v{r+3}, v{r+2}, s55")
        if first: a(f"v_xor_b32 v{acc}, s56, v{tmp}")
        else:     a(f"v_bitop3_b32 v{acc}, v{acc}, v{tmp}, s56 bitop3:0xf6")
        a(f"v_bitop3_b32 v{acc}, v{acc}, v{tmp+1}, s57 bitop3:0xf6")
    def dual_store(data, voff, soff):
        if opt.fast: a(f"buffer_store_dwordx4 {data}, {voff}, s[40:43], {soff} offen")
        a(f"s_add_u32 s61, {soff}, {WS_SLOW}")
        a(f"buffer_store_dwordx4 {data}, {voff}, s[40:43], s61 offen sc1")
    def slow_if_nofast(offs):
        if not opt.fast:
            for o in offs: a(f"s_add_u32 {o}, {o}, {WS_SLOW}")
    def poll_tail(ok, again, offs):
        a(f"s_add_u32 s59, s59, 1\ns_cbranch_vccz {ok}")
        if offs and opt.fast:
            a(f"s_cmp_eq_u32 s59, {NFAST}\ns_cselect_b32 s95, {WS_SLOW}, 0")
            for o in offs: a(f"s_add_u32 {o}, {o}, s95")
        a(f"s_cmp_gt_u32 s59, {SPIN_MAX}\ns_cbranch_scc1 {ok}")
        if opt.sleep: a(f"s_sleep {opt.sleep}")
        a(f"s_branch {again}")
    def lds_wait(label, off, nflags):
        a(f"v_mov_b32 v10, 0\ns_mov_b32 s59, 0")
        a.label(label)
        if nflags == 1:
            a(f"ds_read_b32 v12, v10 offset:{off}\ns_add_u32 s59, s59, 1\ns_waitcnt lgkmcnt(0)")
        else:
            a(f"""ds_read_b128 v[12:15], v10 offset:{off}
            s_add_u32 s59, s59, 1
            s_waitcnt lgkmcnt(0)
            v_and_b32 v12, v12, v13
            v_and_b32 v14, v14, v15
            v_and_b32 v12, v12, v14
            s_nop 0""")
        a(f"""v_readfirstlane_b32 s60, v12
        s_cmp_gt_u32 s59, {SPIN_MAX*16}
        s_cbranch_scc1 {label}_x
        s_cmp_eq_u32 s60, 0
        s_cbranch_scc1 {label}""")
        a.label(label + "_x")
    def mask4(r):
        for k in range(4): a(f"v_and_b32 v{r+k}, s58, v{r+k}")
    def wave_sum_to_sgpr(v, s):
        for r in (8, 4, 2, 1):
            a(f"v_add_f32_dpp v{v}, v{v}, v{v} row_ror:{r} row_mask:0xf bank_mask:0xf")
        a(f"v_add_f32_dpp v{v}, v{v}, v{v} row_bcast:15 row_mask:0xa bank_mask:0xf")
        a(f"v_add_f32_dpp v{v}, v{v}, v{v} row_bcast:31 row_mask:0xc bank_mask:0xf")
        a(f"v_readlane_b32 s{s}, v{v}, 63")
    def gemv_tile(R, A, acc, first, B0=160):
        def perms(e, B):
            w = e >> 1; sel = 49 if (e & 1) else 48
            for u in range(4):
                a(f"v_perm_b32 v{B+u}, v{R+(2*u+1)*4+w}, v{R+(2*u)*4+w}, s{sel}")
        perms(0, B0)
        for e in range(8):
            B = B0 + 4*(e & 1)
            if e < 7: perms(e+1, B0 + 4*((e+1) & 1))
            c = "0" if first else f"v[{acc+4*e}:{acc+4*e+3}]"
            a(f"v_mfma_f32_16x16x32_bf16 v[{acc+4*e}:{acc+4*e+3}], v[{A}:{A+3}], v[{B}:{B+3}], {c}")
    def transpose_pairs(R, D, total_after):
        for u in range(4):
            a(f"s_waitcnt vmcnt({6-2*u+total_after})")
            for e in range(8):
                w = e >> 1; sel = 49 if (e & 1) else 48
                a(f"v_perm_b32 v{D+4*e+u}, v{R+(2*u+1)*4+w}, v{R+(2*u)*4+w}, s{sel}")
    def mfma_tile(D, A, acc):
        for e in range(8):
            a(f"v_mfma_f32_16x16x32_bf16 v[{acc+4*e}:{acc+4*e+3}], v[{A}:{A+3}], v[{D+4*e}:{D+4*e+3}], 0")
    def publish_out():
        for k in range(4): a(f"v_cndmask_b32 v{16+k}, v{128+4*k}, v{128+4*(4+k)}, s[62:63]")
        tag4([16, 17, 18, 19])
        exec_set(-1, 0)
        a("buffer_store_dwordx4 v[16:19], v13, s[40:43], s39 offen sc1")
        a("s_mov_b64 exec, -1")
    def out_addr_setup():
        a("""v_and_b32 v12, 16, v0
        v_cmp_ne_u32 s[62:63], 0, v12
        v_lshlrev_b32 v13, 5, v3
        v_lshl_add_u32 v13, v2, 4, v13""")

    a("s_cmp_ge_u32 s2, 256\ns_cbranch_scc1 L_exit")
    stamp(0)
    a("""s_load_dwordx16 s[8:23], s[0:1], 0
    s_load_dwordx8 s[24:31], s[0:1], 64
    v_lshrrev_b32 v1, 6, v0
    v_and_b32 v0, 63, v0
    v_readfirstlane_b32 s3, v1
    s_and_b32 s4, s2, 7
    s_lshr_b32 s5, s2, 3
    v_lshrrev_b32 v2, 4, v0
    v_and_b32 v3, 15, v0
    s_mov_b32 s48, 0x05040100
    s_mov_b32 s49, 0x07060302
    s_mov_b32 s50, 0x07060500
    s_mov_b32 s51, 0x07060501
    s_mov_b32 s52, 0x07060502
    s_mov_b32 s53, 0x07060503
    s_mov_b32 s54, 0x0c0c0400
    s_mov_b32 s55, 0x04000c0c
    s_mov_b32 s58, 0xffffff00
    s_cmp_eq_u32 s3, 0
    s_cbranch_scc1 L_roleQ
    s_cmp_eq_u32 s3, 1
    s_cbranch_scc1 L_roleF
    s_cmp_lt_u32 s3, 4
    s_cbranch_scc1 L_roleO
    s_branch L_roleA""")

    def load_epoch():
        a("s_load_dword s6, s[30:31], 0")
        srd(40, 30, WS_SIZE)

    def issue_w():
        for tile in range(2):
            for i in range(8):
                r = 64 + (tile*8 + i)*4
                a(f"buffer_load_dwordx4 v[{r}:{r+3}], v50, s[32:35], s36 offen {NT}")
                if tile == 0 and i == 7:
                    a("s_add_u32 s36, s36, s96")
                elif not (tile == 1 and i == 7):
                    a("s_add_u32 s36, s36, s37")
    def x_load():
        srd(44, 8, 1024)
        a("buffer_load_dwordx4 v[4:7], v8, s[44:47], 0 offen")
    def w_voff(stride):
        a(f"""v_and_b32 v50, 56, v0
        v_mul_u32_u24 v50, {stride}, v50
        v_and_b32 v10, 7, v0
        v_lshl_add_u32 v50, v10, 4, v50
        v_lshlrev_b32 v8, 4, v0""")
    def layernorm(lds_xn):
        for k in range(4):
            a(f"v_lshlrev_b32 v{16+2*k}, 16, v{4+k}\nv_and_b32 v{17+2*k}, 0xffff0000, v{4+k}")
        a("""v_add_f32 v24, v16, v17
        v_add_f32 v25, v18, v19
        v_add_f32 v26, v20, v21
        v_add_f32 v27, v22, v23
        v_add_f32 v24, v24, v25
        v_add_f32 v26, v26, v27
        v_add_f32 v24, v24, v26""")
        wave_sum_to_sgpr(24, 60)
        a("v_mov_b32 v25, 0x3b000000\nv_mul_f32 v25, s60, v25")
        for k in range(8): a(f"v_sub_f32 v{32+k}, v{16+k}, v25")
        a("v_mul_f32 v24, v32, v32")
        for k in range(1, 8): a(f"v_fmac_f32 v24, v{32+k}, v{32+k}")
        wave_sum_to_sgpr(24, 61)
        a("""v_mov_b32 v26, 0x3b000000
        v_mul_f32 v26, s61, v26
        v_cvt_pk_bf16_f32 v28, v25, v26
        v_lshlrev_b32 v29, 16, v28
        v_and_b32 v30, 0xffff0000, v28
        v_add_f32 v30, 0x3727c5ac, v30
        v_cvt_pk_bf16_f32 v30, v30, v30
        v_and_b32 v30, 0xffff0000, v30
        v_sqrt_f32 v30, v30
        v_cvt_pk_bf16_f32 v30, v30, v30
        v_and_b32 v30, 0xffff0000, v30
        v_rcp_f32 v30, v30""")
        for k in range(8): a(f"v_sub_f32 v{32+k}, v{16+k}, v29")
        for k in range(4): a(f"v_cvt_pk_bf16_f32 v{40+k}, v{32+2*k}, v{33+2*k}")
        for k in range(4):
            a(f"v_lshlrev_b32 v{32+2*k}, 16, v{40+k}\nv_and_b32 v{33+2*k}, 0xffff0000, v{40+k}")
        for k in range(8): a(f"v_mul_f32 v{32+k}, v{32+k}, v30")
        for k in range(4): a(f"v_cvt_pk_bf16_f32 v{40+k}, v{32+2*k}, v{33+2*k}")
        a(f"ds_write_b128 v8, v[40:43] offset:{lds_xn}")
        a(f"""v_and_b32 v17, 1, v3
        v_lshlrev_b32 v17, 4, v17
        v_lshl_add_u32 v17, v2, 5, v17
        v_add_u32 v17, s38, v17
        ds_read_b128 v[8:11], v17 offset:{lds_xn}
        ds_read_b128 v[12:15], v17 offset:{lds_xn+128}""")
    def slice_epilogue():
        a("v_and_b32 v16, 8, v0\nv_cmp_ne_u32 s[62:63], 0, v16")
        a("""v_and_b32 v17, 7, v0
        v_lshlrev_b32 v17, 5, v17
        v_lshl_add_u32 v17, v16, 1, v17""")
        for k in range(4):
            a(f"v_cndmask_b32 v{20+k}, v{128+4*k}, v{128+4*(4+k)+1}, s[62:63]")
            a(f"v_cndmask_b32 v{24+k}, v{128+4*(4+k)}, v{128+4*k+1}, s[62:63]")
        for k in range(4):
            a(f"v_add_f32_dpp v{20+k}, v{24+k}, v{20+k} row_ror:8 row_mask:0xf bank_mask:0xf")
        tag4([20, 21, 22, 23])
        exec_set("0xffff", 0)
        dual_store("v[20:23]", "v17", "s39")
        a("s_mov_b64 exec, -1")

    a.label("L_roleQ")
    a("s_setprio 3")
    a(f"""s_and_b32 s96, s5, 7
    s_lshr_b32 s97, s5, 3
    s_lshl_b32 s36, s97, 20
    s_lshl_b32 s98, s4, 10
    s_add_u32 s36, s36, s98
    s_lshl_b32 s98, s96, 7
    s_add_u32 s36, s36, s98
    s_mov_b32 s37, 8192
    s_lshl_b32 s38, s97, 8
    s_lshl_b32 s39, s4, 13
    s_lshl_b32 s98, s97, 11
    s_add_u32 s39, s39, s98
    s_lshl_b32 s98, s96, 8
    s_add_u32 s39, s39, s98
    s_add_u32 s39, s39, {WS_QP}
    s_mov_b32 s96, {57*8192}""")
    w_voff(8192)
    a("s_waitcnt lgkmcnt(0)")
    x_load()
    srd(32, 14, 4194304)
    issue_w()
    a("s_barrier")
    load_epoch()
    a(f"v_mov_b32 v16, 0\nv_lshlrev_b32 v17, 2, v0")
    exec_set("0xffff", 0)
    a(f"ds_write_b32 v17, v16 offset:{L_FL}\ns_mov_b64 exec, -1")
    stamp(1)
    a("s_waitcnt vmcnt(16) lgkmcnt(0)")
    stamp(2)
    make_tag()
    layernorm(L_XNQ)
    stamp(3)
    a("s_waitcnt vmcnt(8) lgkmcnt(0)")
    gemv_tile(64, 8, 128, True)
    a("s_waitcnt vmcnt(0)")
    gemv_tile(96, 12, 128, False)
    slice_epilogue()
    stamp(4)
    a("s_barrier")
    a(f"""s_lshl_b32 s96, s4, 13
    s_add_u32 s96, s96, {WS_QP}
    s_add_u32 s97, s96, 4096
    v_lshlrev_b32 v8, 4, v0
    s_mov_b32 s59, 0""")
    slow_if_nofast(["s96", "s97"])
    a("s_barrier")
    stamp(5)
    def q_gather():
        for i in range(8):
            so = "s96" if i < 4 else "s97"
            a(f"buffer_load_dwordx4 v[{64+4*i}:{67+4*i}], v8, s[40:43], {so} offen offset:{(i&3)*1024} sc1")
    q_gather()
    a("s_barrier")
    a("s_branch L_qchk")
    a.label("L_qretry")
    q_gather()
    a.label("L_qchk")
    a("s_waitcnt vmcnt(0)")
    for i in range(8): check4(16, 64+4*i, 18, first=(i == 0))
    a("v_cmp_ne_u32 vcc, 0, v16")
    poll_tail("L_qok", "L_qretry", ["s96", "s97"])
    a.label("L_qok")
    stamp(6)
    count_stamp()
    for i in range(8): mask4(64+4*i)
    for half in range(2):
        for k in range(4):
            r0 = 64 + 4*half + k
            a(f"v_add_f32 v{r0}, v{r0}, v{r0+8}\nv_add_f32 v{r0+16}, v{r0+16}, v{r0+24}")
    for half in range(2):
        for k in range(4):
            r0 = 64 + 4*half + k
            a(f"v_add_f32 v{r0}, v{r0}, v{r0+16}")
    for half in range(2):
        a(f"v_cvt_pk_bf16_f32 v{20+2*half}, v{64+4*half}, v{65+4*half}\nv_cvt_pk_bf16_f32 v{21+2*half}, v{66+4*half}, v{67+4*half}")
    a(f"""v_lshlrev_b32 v17, 3, v0
    v_mov_b32 v18, 1
    v_mov_b32 v19, 0
    ds_write_b64 v17, v[20:21] offset:{L_Q}
    ds_write_b64 v17, v[22:23] offset:{L_Q+512}
    ds_write_b32 v19, v18 offset:{L_FL}""")
    stamp(7)
    a("s_branch L_end")

    a.label("L_roleF")
    a(f"""s_lshl_b32 s96, s4, 2
    s_mul_i32 s97, s4, 3
    s_add_u32 s97, s97, 4
    s_cmp_lt_u32 s4, 4
    s_cselect_b32 s96, s96, s97
    s_cselect_b32 s97, 32, 24
    s_cmp_lt_u32 s5, s97
    s_cselect_b32 s100, 1, 0
    s_lshr_b32 s97, s5, 3
    s_add_u32 s98, s96, s97
    s_lshr_b32 s99, s5, 1
    s_and_b32 s99, s99, 3
    s_mul_i32 s36, s99, {128*3584}
    s_lshl_b32 s98, s98, 7
    s_add_u32 s36, s36, s98
    s_mov_b32 s37, 3584
    s_lshl_b32 s38, s99, 8
    s_lshl_b32 s39, s4, 13
    s_and_b32 s101, s5, 1
    s_lshl_b32 s98, s101, 12
    s_add_u32 s39, s39, s98
    s_lshl_b32 s98, s99, 10
    s_add_u32 s39, s39, s98
    s_lshl_b32 s98, s97, 8
    s_add_u32 s39, s39, s98
    s_add_u32 s39, s39, {WS_GU}
    s_lshl_b32 s96, s96, 16
    s_lshr_b32 s97, s5, 2
    s_lshl_b32 s98, s97, 15
    s_add_u32 s98, s98, s96
    s_and_b32 s97, s5, 3
    s_lshl_b32 s99, s97, 8
    s_add_u32 s98, s98, s99
    s_add_u32 s99, s98, 4096
    s_mov_b32 s96, {57*3584}""")
    w_voff(3584)
    a("s_waitcnt lgkmcnt(0)")
    x_load()
    a("s_barrier")
    load_epoch()
    a("""s_cmp_eq_u32 s101, 0
    s_cselect_b32 s60, s20, s22
    s_cselect_b32 s61, s21, s23""")
    srd(32, 60, 1835008)
    a("s_waitcnt vmcnt(0) lgkmcnt(0)")
    make_tag()
    layernorm(L_XNF)
    srd(44, 24, 1835008)
    a("""v_lshlrev_b32 v51, 13, v2
    v_lshl_add_u32 v51, v3, 4, v51
    s_waitcnt lgkmcnt(0)
    s_setprio 1""")
    stamp(1)
    a("s_barrier\ns_barrier\ns_barrier")
    a("s_cmp_eq_u32 s100, 0\ns_cbranch_scc1 L_end")
    issue_w()
    for i in range(8):
        a(f"buffer_load_dwordx4 v[{168+4*i}:{171+4*i}], v51, s[44:47], s{98+(i>>2)} offen offset:{(i&3)*1024} {NT}")
    stamp(2)
    a(f"""v_lshrrev_b32 v56, 3, v3
    v_lshlrev_b32 v56, 12, v56
    v_and_b32 v57, 3, v3
    v_lshl_add_u32 v56, v57, 10, v56
    v_and_b32 v57, 4, v3
    v_lshl_add_u32 v56, v57, 2, v56
    v_lshl_add_u32 v56, v2, 5, v56
    s_lshl_b32 s98, s4, 13
    s_lshr_b32 s99, s5, 2
    s_lshl_b32 s96, s99, 7
    s_add_u32 s98, s98, s96
    s_add_u32 s98, s98, {WS_GU}""")
    slow_if_nofast(["s98"])
    a("s_waitcnt vmcnt(16)")
    gemv_tile(64, 8, 128, True)
    a("s_waitcnt vmcnt(8)")
    gemv_tile(96, 12, 128, False)
    slice_epilogue()
    stamp(3)
    a(f"""s_lshl_b32 s39, s4, 3
    s_add_u32 s39, s39, s99
    s_add_u32 s39, s39, 128
    s_lshl_b32 s39, s39, 11
    s_lshl_b32 s96, s97, 9
    s_add_u32 s39, s39, s96
    s_add_u32 s39, s39, {WS_OP}
    s_mov_b32 s59, 0""")
    out_addr_setup()
    nst = 2 if opt.fast else 1
    transpose_pairs(168, 64, nst)
    stamp(4)
    a.label("L_gpoll")
    a("buffer_load_dwordx4 v[40:43], v56, s[40:43], s98 offen sc1\ns_waitcnt vmcnt(0)")
    check4(12, 40, 14, first=True)
    a("v_cmp_ne_u32 vcc, 0, v12")
    poll_tail("L_gok", "L_gpoll", ["s98"])
    a.label("L_gok")
    stamp(5)
    count_stamp()
    mask4(40)
    for q in ("[1,0,3,2]", "[2,3,0,1]"):
        for k in range(4): a(f"v_add_f32_dpp v{40+k}, v{40+k}, v{40+k} quad_perm:{q} row_mask:0xf bank_mask:0xf")
    a("v_cvt_pk_bf16_f32 v44, v40, v41\nv_cvt_pk_bf16_f32 v45, v42, v43")
    a("v_lshlrev_b32 v40, 16, v44\nv_and_b32 v41, 0xffff0000, v44\nv_lshlrev_b32 v42, 16, v45\nv_and_b32 v43, 0xffff0000, v45")
    a("v_and_b32 v12, 8, v0\nv_cmp_ne_u32 vcc, 0, v12")
    for k in range(4): a(f"v_mov_b32_dpp v{44+k}, v{40+k} row_ror:8 row_mask:0xf bank_mask:0xf")
    for k in range(4):
        a(f"v_cndmask_b32 v{48+k}, v{40+k}, v{44+k}, vcc")
        a(f"v_cndmask_b32 v{52+k}, v{44+k}, v{40+k}, vcc")
    a("s_mov_b32 s60, 0x3d372713\ns_mov_b32 s61, 0xc0135761")
    for k in range(4): a(f"v_mul_f32 v{40+k}, v{48+k}, v{48+k}")
    for k in range(4): a(f"v_fma_f32 v{40+k}, v{40+k}, s60, 1.0")
    for k in range(4): a(f"v_mul_f32 v{40+k}, v{40+k}, v{48+k}")
    for k in range(4): a(f"v_mul_f32 v{40+k}, s61, v{40+k}")
    for k in range(4): a(f"v_exp_f32 v{40+k}, v{40+k}")
    for k in range(4): a(f"v_add_f32 v{40+k}, 1.0, v{40+k}")
    for k in range(4): a(f"v_rcp_f32 v{40+k}, v{40+k}")
    for k in range(4): a(f"v_mul_f32 v{40+k}, v{40+k}, v{48+k}")
    a("v_cvt_pk_bf16_f32 v44, v40, v41\nv_cvt_pk_bf16_f32 v45, v42, v43")
    a("v_lshlrev_b32 v40, 16, v44\nv_and_b32 v41, 0xffff0000, v44\nv_lshlrev_b32 v42, 16, v45\nv_and_b32 v43, 0xffff0000, v45")
    for k in range(4): a(f"v_mul_f32 v{40+k}, v{40+k}, v{52+k}")
    a("v_cvt_pk_bf16_f32 v44, v40, v41\nv_cvt_pk_bf16_f32 v45, v42, v43")
    a("v_and_b32 v12, 4, v0\nv_cmp_ne_u32 vcc, 0, v12")
    a("v_mov_b32_dpp v46, v44 row_ror:4 row_mask:0xf bank_mask:0xf\nv_mov_b32_dpp v47, v45 row_ror:4 row_mask:0xf bank_mask:0xf")
    a("""v_cndmask_b32 v24, v44, v46, vcc
    v_cndmask_b32 v25, v45, v47, vcc
    v_cndmask_b32 v26, v46, v44, vcc
    v_cndmask_b32 v27, v47, v45, vcc""")
    mfma_tile(64, 24, 128)
    publish_out()
    stamp(6)
    a("s_branch L_end")

    a.label("L_roleA")
    a("s_setprio 2")
    a(f"""s_sub_u32 s3, s3, 4
    s_lshl_b32 s96, s4, 24
    s_lshr_b32 s97, s5, 3
    s_lshl_b32 s97, s97, 18
    s_add_u32 s96, s96, s97
    s_and_b32 s97, s5, 7
    s_lshl_b32 s97, s97, 10
    s_add_u32 s96, s96, s97
    s_lshl_b32 s97, s3, 13
    s_add_u32 s96, s96, s97
    s_add_u32 s96, s96, {61440*256}
    s_add_u32 s97, s96, 131072
    v_and_b32 v8, 3, v3
    v_lshlrev_b32 v8, 15, v8
    v_lshrrev_b32 v9, 2, v3
    v_lshl_add_u32 v8, v9, 8, v8
    v_lshl_add_u32 v8, v2, 4, v8
    v_lshlrev_b32 v9, 8, v2
    v_lshl_add_u32 v9, v3, 4, v9
    s_waitcnt lgkmcnt(0)""")
    srd(32, 10, 134217728)
    srd(36, 12, 134217728)
    a("s_barrier")
    for T in range(2):
        for t in range(4):
            r = 64 + (T*4 + t)*4
            a(f"buffer_load_dwordx4 v[{r}:{r+3}], v8, s[32:35], s{96+T} offen offset:{t*64} {NT}")
    load_epoch()
    stamp(1)
    a("s_barrier")
    for i in range(8):
        r = 96 + i*4
        a(f"buffer_load_dwordx4 v[{r}:{r+3}], v9, s[36:39], s96 offen {NT}")
        if i < 7: a("s_add_u32 s96, s96, 32768")
    a("s_waitcnt lgkmcnt(0)")
    make_tag()
    a(f"""s_lshl_b32 s36, s4, 16
    s_lshl_b32 s37, s5, 11
    s_add_u32 s36, s36, s37
    s_lshl_b32 s37, s3, 9
    s_add_u32 s36, s36, s37
    s_add_u32 s36, s36, {WS_AP}
    v_lshlrev_b32 v52, 4, v0
    v_add_u32 v52, s36, v52
    s_lshl_b32 s36, s4, 2
    s_add_u32 s36, s36, s3
    s_lshl_b32 s36, s36, 9
    s_lshl_b32 s37, s5, 4
    s_add_u32 s36, s36, s37
    s_add_u32 s36, s36, {WS_ML}
    v_mov_b32 v53, s36
    v_cmp_eq_u32 s[62:63], 32, v0
    s_lshl_b32 s36, s3, 11
    v_lshlrev_b32 v54, 9, v2
    v_lshl_add_u32 v54, v3, 5, v54
    v_add_u32 v54, s36, v54
    s_lshl_b32 s36, s3, 3
    v_lshrrev_b32 v55, 2, v3
    v_lshlrev_b32 v55, 5, v55
    v_add_u32 v55, s36, v55
    v_cndmask_b32 v52, v52, v53, s[62:63]
    s_lshl_b32 s36, s3, 9
    v_and_b32 v56, 31, v0
    v_lshlrev_b32 v56, 4, v56
    v_add_u32 v56, s36, v56
    s_lshl_b32 s36, s3, 5
    v_mov_b32 v57, s36
    s_lshl_b32 s36, s3, 2
    v_mov_b32 v58, s36
    v_mov_b32 v59, 1
    v_lshrrev_b32 v60, 2, v3
    v_lshlrev_b32 v60, 8, v60
    v_lshl_add_u32 v60, v2, 4, v60""")
    stamp(2)
    a(f"s_waitcnt vmcnt({8-opt.kv})")
    stamp(3)
    a("s_barrier\ns_barrier")
    transpose_pairs(96, 160, 0)
    lds_wait("L_await_q", L_FL, 1)
    stamp(4)
    for t in range(4):
        a(f"ds_read_b128 v[{16+4*t}:{19+4*t}], v60 offset:{L_Q + t*64}")
    a("s_waitcnt lgkmcnt(0)")
    for t in range(4):
        for T in range(2):
            c = "0" if t == 0 else f"v[{32+4*T}:{35+4*T}]"
            a(f"v_mfma_f32_16x16x32_bf16 v[{32+4*T}:{35+4*T}], v[{64+(T*4+t)*4}:{67+(T*4+t)*4}], v[{16+4*t}:{19+4*t}], {c}")
    a("s_mov_b32 s60, 0x3db504f3")
    for k in range(4): a(f"v_cvt_pk_bf16_f32 v{40+k}, v{32+2*k}, v{33+2*k}")
    for k in range(4): a(f"v_lshlrev_b32 v{32+2*k}, 16, v{40+k}\nv_and_b32 v{33+2*k}, 0xffff0000, v{40+k}")
    for k in range(8): a(f"v_mul_f32 v{32+k}, s60, v{32+k}")
    for k in range(4): a(f"v_cvt_pk_bf16_f32 v{40+k}, v{32+2*k}, v{33+2*k}")
    for k in range(4): a(f"v_lshlrev_b32 v{32+2*k}, 16, v{40+k}\nv_and_b32 v{33+2*k}, 0xffff0000, v{40+k}")
    a("""v_max3_f32 v44, v32, v33, v34
    v_max3_f32 v45, v35, v36, v37
    v_max3_f32 v44, v44, v38, v39
    v_max_f32 v44, v44, v45
    v_mov_b32 v45, v44
    v_permlane16_swap_b32 v44, v45
    v_max_f32 v44, v44, v45
    v_mov_b32 v45, v44
    v_permlane32_swap_b32 v44, v45
    v_max_f32 v44, v44, v45
    s_mov_b32 s60, 0x3fb8aa3b
    v_mul_f32 v46, s60, v44""")
    for k in range(8): a(f"v_fma_f32 v{32+k}, v{32+k}, s60, -v46")
    for k in range(8): a(f"v_exp_f32 v{32+k}, v{32+k}")
    for k in range(4): a(f"v_cvt_pk_bf16_f32 v{40+k}, v{32+2*k}, v{33+2*k}")
    mfma_tile(160, 40, 128)
    a("""v_add_f32 v45, v32, v33
    v_add_f32 v46, v34, v35
    v_add_f32 v47, v36, v37
    v_add_f32 v48, v38, v39
    v_add_f32 v45, v45, v46
    v_add_f32 v47, v47, v48
    v_add_f32 v45, v45, v47
    v_mov_b32 v46, v45
    v_permlane16_swap_b32 v45, v46
    v_add_f32 v45, v45, v46
    v_mov_b32 v46, v45
    v_permlane32_swap_b32 v45, v46
    v_add_f32 v45, v45, v46""")
    stamp(5)
    for e in range(8): a(f"v_mov_b32 v{16+e}, v{128+4*e}")
    a(f"""ds_write_b128 v54, v[16:19] offset:{L_AO}
    ds_write_b128 v54, v[20:23] offset:{L_AO+16}""")
    exec_set("0x1111", 0)
    a(f"""ds_write_b64 v55, v[44:45] offset:{L_ST}
    s_mov_b64 exec, 1
    ds_write_b32 v58, v59 offset:{L_FL+16}
    s_mov_b64 exec, -1""")
    lds_wait("L_await_a", L_FL+16, 4)
    stamp(6)
    for w in range(4): a(f"ds_read_b128 v[{16+4*w}:{19+4*w}], v56 offset:{L_AO + w*2048}")
    a(f"ds_read_b128 v[32:35], v57 offset:{L_ST}\nds_read_b128 v[36:39], v57 offset:{L_ST+16}")
    a("""s_mov_b32 s60, 0x3fb8aa3b
    v_mov_b32 v42, 0
    s_waitcnt lgkmcnt(0)
    v_max3_f32 v40, v32, v34, v36
    v_max_f32 v40, v40, v38
    v_sub_f32 v32, v32, v40
    v_sub_f32 v34, v34, v40
    v_sub_f32 v36, v36, v40
    v_sub_f32 v38, v38, v40
    v_mul_f32 v32, s60, v32
    v_mul_f32 v34, s60, v34
    v_mul_f32 v36, s60, v36
    v_mul_f32 v38, s60, v38
    v_exp_f32 v32, v32
    v_exp_f32 v34, v34
    v_exp_f32 v36, v36
    v_exp_f32 v38, v38""")
    for k in range(4): a(f"v_mul_f32 v{44+k}, v32, v{16+k}")
    a("v_mul_f32 v41, v32, v33")
    for w, al in ((1, 34), (2, 36), (3, 38)):
        for k in range(4): a(f"v_fmac_f32 v{44+k}, v{al}, v{16+4*w+k}")
        a(f"v_fmac_f32 v41, v{al}, v{al+1}")
    a(f"""v_cndmask_b32 v44, v44, v40, s[62:63]
    v_cndmask_b32 v45, v45, v41, s[62:63]
    v_cndmask_b32 v46, v46, v42, s[62:63]
    v_cndmask_b32 v47, v47, v42, s[62:63]""")
    tag4([44, 45, 46, 47])
    exec_set(-1, 1)
    a("s_mov_b32 s60, 0")
    dual_store("v[44:47]", "v52", "s60")
    a(f"""s_mov_b64 exec, 1
    ds_write_b32 v58, v59 offset:{L_FL+32}
    s_mov_b64 exec, -1""")
    stamp(7)
    a("s_branch L_end")

    a.label("L_roleO")
    a(f"""s_sub_u32 s3, s3, 2
    s_lshr_b32 s96, s5, 2
    s_and_b32 s97, s5, 3
    s_lshl_b32 s98, s4, 19
    s_lshl_b32 s99, s96, 16
    s_add_u32 s98, s98, s99
    s_lshl_b32 s99, s3, 15
    s_add_u32 s98, s98, s99
    s_lshl_b32 s99, s97, 8
    s_add_u32 s98, s98, s99
    s_add_u32 s99, s98, 4096
    v_lshlrev_b32 v8, 13, v2
    v_lshl_add_u32 v8, v3, 4, v8
    s_lshl_b32 s100, s4, 3
    s_add_u32 s100, s100, s96
    s_waitcnt lgkmcnt(0)""")
    a("s_barrier")
    load_epoch()
    srd(32, 16, 4194304)
    a(f"""s_lshl_b32 s60, s4, 16
    s_lshr_b32 s61, s96, 1
    s_lshl_b32 s101, s61, 9
    s_add_u32 s60, s60, s101
    s_and_b32 s101, s96, 1
    s_lshl_b32 s101, s101, 8
    s_add_u32 s60, s60, s101
    s_lshl_b32 s101, s3, 7
    s_add_u32 s60, s60, s101
    s_add_u32 s36, s60, {WS_AP}
    s_add_u32 s37, s36, 32768
    v_lshlrev_b32 v9, 11, v3
    v_lshl_add_u32 v9, v2, 5, v9
    s_lshl_b32 s38, s4, 2
    s_add_u32 s38, s38, s61
    s_lshl_b32 s38, s38, 9
    s_add_u32 s38, s38, {WS_ML}
    v_lshlrev_b32 v11, 4, v3
    s_lshl_b32 s39, s100, 1
    s_add_u32 s39, s39, s3
    s_lshl_b32 s39, s39, 11
    s_lshl_b32 s61, s97, 9
    s_add_u32 s39, s39, s61
    s_add_u32 s39, s39, {WS_OP}""")
    slow_if_nofast(["s36", "s37", "s38"])
    a("s_waitcnt lgkmcnt(0)")
    make_tag()
    stamp(1)
    a("s_barrier\ns_barrier\ns_barrier")
    for i in range(8):
        a(f"buffer_load_dwordx4 v[{64+4*i}:{67+4*i}], v8, s[32:35], s{98+(i>>2)} offen offset:{(i&3)*1024} {NT}")
    stamp(2)
    transpose_pairs(64, 96, 0)
    stamp(3)
    lds_wait("L_await_pub", L_FL+32, 4)
    out_addr_setup()
    a("s_mov_b32 s59, 0")
    stamp(4)
    a.label("L_opoll")
    a("""buffer_load_dwordx4 v[32:35], v11, s[40:43], s38 offen sc1
    buffer_load_dwordx4 v[36:39], v11, s[40:43], s38 offen offset:256 sc1
    buffer_load_dwordx4 v[16:19], v9, s[40:43], s36 offen sc1
    buffer_load_dwordx4 v[20:23], v9, s[40:43], s36 offen offset:16 sc1
    buffer_load_dwordx4 v[24:27], v9, s[40:43], s37 offen sc1
    buffer_load_dwordx4 v[28:31], v9, s[40:43], s37 offen offset:16 sc1
    s_waitcnt vmcnt(0)""")
    for i in range(6): check4(12, 16+4*i, 14, first=(i == 0))
    a("v_cmp_ne_u32 vcc, 0, v12")
    poll_tail("L_ook", "L_opoll", ["s36", "s37", "s38"])
    a.label("L_ook")
    stamp(5)
    count_stamp()
    for i in range(6): mask4(16+4*i)
    a("v_max_f32 v44, v32, v36")
    for r in (8, 4, 2, 1): a(f"v_max_f32_dpp v44, v44, v44 row_ror:{r} row_mask:0xf bank_mask:0xf")
    a("""s_mov_b32 s60, 0x3fb8aa3b
    v_sub_f32 v32, v32, v44
    v_sub_f32 v36, v36, v44
    v_mul_f32 v32, s60, v32
    v_mul_f32 v36, s60, v36
    v_exp_f32 v32, v32
    v_exp_f32 v36, v36
    s_nop 0
    v_mul_f32 v45, v32, v33
    v_fmac_f32 v45, v36, v37""")
    for k in range(8): a(f"v_mul_f32 v{16+k}, v32, v{16+k}")
    for k in range(8): a(f"v_fmac_f32 v{16+k}, v36, v{24+k}")
    for r in (8, 4, 2, 1):
        a(f"v_add_f32_dpp v45, v45, v45 row_ror:{r} row_mask:0xf bank_mask:0xf")
        for k in range(8): a(f"v_add_f32_dpp v{16+k}, v{16+k}, v{16+k} row_ror:{r} row_mask:0xf bank_mask:0xf")
    a("v_rcp_f32 v45, v45")
    for k in range(8): a(f"v_mul_f32 v{16+k}, v{16+k}, v45")
    for k in range(4): a(f"v_cvt_pk_bf16_f32 v{24+k}, v{16+2*k}, v{17+2*k}")
    mfma_tile(96, 24, 128)
    publish_out()
    stamp(6)
    a("""s_cmp_eq_u32 s3, 0
    s_cbranch_scc0 L_end
    s_cmp_lt_u32 s2, 128
    s_cbranch_scc0 L_end""")
    srd(44, 8, 1024)
    a(f"""s_lshl_b32 s60, s4, 4
    s_add_u32 s60, s60, s5
    s_lshl_b32 s61, s60, 3
    v_mov_b32 v13, s61
    buffer_load_dwordx2 v[28:29], v13, s[44:47], 0 offen
    s_lshl_b32 s61, s60, 4
    s_add_u32 s61, s61, {WS_OP}
    s_add_u32 s98, s61, {64*2048}
    s_add_u32 s99, s61, {128*2048}
    v_lshlrev_b32 v12, 11, v0
    v_and_b32 v15, 7, v0
    v_cmp_gt_u32 vcc, 6, v15
    v_cmp_gt_u32 s[62:63], 32, v0
    s_or_b64 s[62:63], s[62:63], vcc
    v_cndmask_b32 v15, 0, v12, s[62:63]
    s_mov_b32 s59, 0""")
    a.label("L_fpoll")
    a("""buffer_load_dwordx4 v[16:19], v12, s[40:43], s61 offen sc1
    buffer_load_dwordx4 v[20:23], v12, s[40:43], s98 offen sc1
    buffer_load_dwordx4 v[24:27], v15, s[40:43], s99 offen sc1
    s_waitcnt vmcnt(0)""")
    check4(14, 16, 30, first=True)
    check4(14, 20, 30)
    check4(14, 24, 30)
    a("v_cmp_ne_u32 vcc, 0, v14")
    poll_tail("L_fok", "L_fpoll", [])
    a.label("L_fok")
    stamp(7)
    mask4(16); mask4(20); mask4(24)
    for k in range(4): a(f"v_add_f32 v{16+k}, v{16+k}, v{20+k}")
    for k in range(4): a(f"v_cndmask_b32 v{24+k}, 0, v{24+k}, s[62:63]")
    for k in range(4): a(f"v_add_f32 v{16+k}, v{16+k}, v{24+k}")
    for r in (8, 4, 2, 1):
        for k in range(4): a(f"v_add_f32_dpp v{16+k}, v{16+k}, v{16+k} row_ror:{r} row_mask:0xf bank_mask:0xf")
    for k in range(4): a(f"v_add_f32_dpp v{16+k}, v{16+k}, v{16+k} row_bcast:15 row_mask:0xa bank_mask:0xf")
    for k in range(4): a(f"v_add_f32_dpp v{16+k}, v{16+k}, v{16+k} row_bcast:31 row_mask:0xc bank_mask:0xf")
    a("""v_lshlrev_b32 v20, 16, v28
    v_and_b32 v21, 0xffff0000, v28
    v_lshlrev_b32 v22, 16, v29
    v_and_b32 v23, 0xffff0000, v29""")
    for k in range(4): a(f"v_add_f32 v{16+k}, v{16+k}, v{20+k}")
    a("v_cvt_pk_bf16_f32 v16, v16, v17\nv_cvt_pk_bf16_f32 v17, v18, v19")
    srd(44, 26, 1024)
    exec_set(0, "0x80000000")
    a("""buffer_store_dwordx2 v[16:17], v13, s[44:47], 0 offen
    s_cmp_eq_u32 s2, 0
    s_cbranch_scc0 L_noepoch
    v_mov_b32 v18, s7
    v_mov_b32 v19, 0
    buffer_store_dword v18, v19, s[40:43], 0 offen sc1""")
    a.label("L_noepoch")
    a("s_mov_b64 exec, -1")
    stamp(8)
    a.label("L_end")
    if opt.endwait: a("s_waitcnt vmcnt(0)")
    if opt.stamps:
        a("""s_waitcnt lgkmcnt(0)
        s_lshl_b32 s96, s2, 4
        s_add_u32 s96, s96, s94
        s_lshl_b32 s96, s96, 7
        s_add_u32 s96, s96, 0x4000000
        s_add_u32 s98, s30, s96
        s_addc_u32 s99, s31, 0
        s_mov_b64 exec, 1
        v_mov_b32 v4, 0""")
        for i in range(NSTAMP):
            a(f"v_mov_b32 v2, s{64+2*i}\nv_mov_b32 v3, s{65+2*i}\nglobal_store_dwordx2 v4, v[2:3], s[98:99] offset:{8*i}\ns_nop 1")
        a("v_mov_b32 v2, 0x54414D50\nv_mov_b32 v3, 0x53\nglobal_store_dwordx2 v4, v[2:3], s[98:99] offset:120\ns_waitcnt vmcnt(0)")
    a.label("L_exit")
    a("s_endpgm")
    body = a.finish()
    if opt.stamps:
        init = "  s_mov_b32 s94, s3\n" + "".join(f"  s_mov_b64 s[{64+2*i}:{65+2*i}], 0\n" for i in range(1, NSTAMP))
        body = body.replace("  s_and_b32 s4, s2, 7\n", init + "  s_and_b32 s4, s2, 7\n", 1)
    hdr = f"""; Fused decode step: LayerNorm -> (GQA sliding-window attention + GEGLU FFN) -> residual sum.
; @launch grid=(256,1,1) block=(512,1,1) lds={LDS_BYTES}
.amdgcn_target "amdgcn-amd-amdhsa--gfx950"
.text
.globl {KNAME}
.p2align 8
.type {KNAME},@function
{KNAME}:
"""
    ftr = f""".section .rodata,"a"
.p2align 6
.amdhsa_kernel {KNAME}
  .amdhsa_next_free_vgpr 256
  .amdhsa_next_free_sgpr 102
  .amdhsa_accum_offset 256
  .amdhsa_group_segment_fixed_size 0
  .amdhsa_kernarg_size 96
  .amdhsa_user_sgpr_count 2
  .amdhsa_user_sgpr_kernarg_segment_ptr 1
  .amdhsa_system_sgpr_workgroup_id_x 1
  .amdhsa_float_denorm_mode_32 3
.end_amdhsa_kernel
"""
    return hdr + body + ftr, a.nnop

if __name__ == "__main__":
    import argparse
    ap = argparse.ArgumentParser()
    ap.add_argument("-o", default="out.s")
    ap.add_argument("--stamps", action="store_true")
    ap.add_argument("--nt", default="nt")
    ap.add_argument("--kv", type=int, default=2)
    ap.add_argument("--sleep", type=int, default=1)
    ap.add_argument("--nofast", action="store_true")
    ap.add_argument("--endwait", action="store_true")
    args = ap.parse_args()
    o = Opt(); o.stamps = args.stamps; o.nt = args.nt; o.kv = args.kv; o.sleep = args.sleep; o.fast = not args.nofast; o.endwait = args.endwait
    text, nn = build(o)
    open(args.o, "w").write(text)
    print("wrote", args.o, "nops inserted:", nn, "lines:", text.count("\n"))
```

```python
import sys
from asmlib import Asm
KNAME = "parallel_sum__sliding_block_cached__glu_gated_geglu__decode_kernel"

WS_E  = 0
WS_QP = 0x10000
WS_GU = 0x20000
WS_ML = 0x30000
WS_AP = 0x40000
WS_OP = 0xC0000
WS_SLOW = 0x200000
WS_SIZE = 0x20000000
L_XNQ = 0
L_XNF = 1024
L_Q   = 2048
L_AO  = 4096
L_ST  = 12288
L_FL  = 12416
LDS_BYTES = 16384
SPIN_MAX = 1 << 14
NFAST = 48
NSTAMP = 15

class Opt:
    stamps = False
    nt = "nt"
    kv = 2
    sleep = 1
    fast = True
    endwait = False
    dbgstamps = False
    dbgcnt = False

def build(opt):
    a = Asm()
    NT = opt.nt
    def stamp(i):
        if opt.stamps: a(f"s_memrealtime s[{64+2*i}:{65+2*i}]")
    def count_stamp():
        if opt.stamps: a("s_mov_b32 s92, s59\ns_mov_b32 s93, 0")
    def srd(dst, ptr, size):
        a(f"s_mov_b32 s{dst}, s{ptr}\ns_and_b32 s{dst+1}, s{ptr+1}, 0xffff\ns_mov_b32 s{dst+2}, {size}\ns_mov_b32 s{dst+3}, 0x20000")
    def exec_set(lo, hi):
        a(f"s_mov_b32 exec_lo, {lo}\ns_mov_b32 exec_hi, {hi}")
    def make_tag():
        a("""s_add_u32 s7, s6, 1
        s_mul_i32 s6, s7, 0x01010101
        s_xor_b32 s6, s6, 0x5c3a96f0
        s_and_b32 s56, s6, 0xffff
        s_and_b32 s57, s6, 0xffff0000
        v_mov_b32 v254, s6""")
    def tag4(regs):
        for k, r in enumerate(regs):
            a(f"v_perm_b32 v{r}, v{r}, v254, s{50+k}")
    def check4(acc, r, tmp, first=False):
        a(f"v_perm_b32 v{tmp}, v{r+1}, v{r}, s54")
        a(f"v_perm_b32 v{tmp+1}, v{r+3}, v{r+2}, s55")
        if first: a(f"v_xor_b32 v{acc}, s56, v{tmp}")
        else:     a(f"v_bitop3_b32 v{acc}, v{acc}, v{tmp}, s56 bitop3:0xf6")
        a(f"v_bitop3_b32 v{acc}, v{acc}, v{tmp+1}, s57 bitop3:0xf6")
    def dual_store(data, voff, soff):
        if opt.fast: a(f"buffer_store_dwordx4 {data}, {voff}, s[40:43], {soff} offen")
        a(f"s_add_u32 s61, {soff}, {WS_SLOW}")
        a(f"buffer_store_dwordx4 {data}, {voff}, s[40:43], s61 offen sc1")
    def slow_if_nofast(offs):
        if not opt.fast:
            for o in offs: a(f"s_add_u32 {o}, {o}, {WS_SLOW}")
    def poll_tail(ok, again, offs):
        a(f"s_add_u32 s59, s59, 1\ns_cbranch_vccz {ok}")
        if offs and opt.fast:
            a(f"s_cmp_eq_u32 s59, {NFAST}\ns_cselect_b32 s95, {WS_SLOW}, 0")
            for o in offs: a(f"s_add_u32 {o}, {o}, s95")
        a(f"s_cmp_gt_u32 s59, {SPIN_MAX}\ns_cbranch_scc1 {ok}")
        if opt.sleep: a(f"s_sleep {opt.sleep}")
        a(f"s_branch {again}")
    def lds_wait(label, off, nflags):
        a(f"v_mov_b32 v10, 0\ns_mov_b32 s59, 0")
        a.label(label)
        if nflags == 1:
            a(f"ds_read_b32 v12, v10 offset:{off}\ns_add_u32 s59, s59, 1\ns_waitcnt lgkmcnt(0)")
        else:
            a(f"""ds_read_b128 v[12:15], v10 offset:{off}
            s_add_u32 s59, s59, 1
            s_waitcnt lgkmcnt(0)
            v_and_b32 v12, v12, v13
            v_and_b32 v14, v14, v15
            v_and_b32 v12, v12, v14
            s_nop 0""")
        a(f"""v_readfirstlane_b32 s60, v12
        s_cmp_gt_u32 s59, {SPIN_MAX*16}
        s_cbranch_scc1 {label}_x
        s_cmp_eq_u32 s60, 0
        s_cbranch_scc1 {label}""")
        a.label(label + "_x")
    def mask4(r):
        for k in range(4): a(f"v_and_b32 v{r+k}, s58, v{r+k}")
    def wave_sum_to_sgpr(v, s):
        for r in (8, 4, 2, 1):
            a(f"v_add_f32_dpp v{v}, v{v}, v{v} row_ror:{r} row_mask:0xf bank_mask:0xf")
        a(f"v_add_f32_dpp v{v}, v{v}, v{v} row_bcast:15 row_mask:0xa bank_mask:0xf")
        a(f"v_add_f32_dpp v{v}, v{v}, v{v} row_bcast:31 row_mask:0xc bank_mask:0xf")
        a(f"v_readlane_b32 s{s}, v{v}, 63")
    def gemv_tile(R, A, acc, first, B0=160):
        def perms(e, B):
            w = e >> 1; sel = 49 if (e & 1) else 48
            for u in range(4):
                a(f"v_perm_b32 v{B+u}, v{R+(2*u+1)*4+w}, v{R+(2*u)*4+w}, s{sel}")
        perms(0, B0)
        for e in range(8):
            B = B0 + 4*(e & 1)
            if e < 7: perms(e+1, B0 + 4*((e+1) & 1))
            c = "0" if first else f"v[{acc+4*e}:{acc+4*e+3}]"
            a(f"v_mfma_f32_16x16x32_bf16 v[{acc+4*e}:{acc+4*e+3}], v[{A}:{A+3}], v[{B}:{B+3}], {c}")
    def transpose_pairs(R, D, total_after):
        for u in range(4):
            a(f"s_waitcnt vmcnt({6-2*u+total_after})")
            for e in range(8):
                w = e >> 1; sel = 49 if (e & 1) else 48
                a(f"v_perm_b32 v{D+4*e+u}, v{R+(2*u+1)*4+w}, v{R+(2*u)*4+w}, s{sel}")
    def mfma_tile(D, A, acc):
        for e in range(8):
            a(f"v_mfma_f32_16x16x32_bf16 v[{acc+4*e}:{acc+4*e+3}], v[{A}:{A+3}], v[{D+4*e}:{D+4*e+3}], 0")
    def publish_out():
        for k in range(4): a(f"v_cndmask_b32 v{16+k}, v{128+4*k}, v{128+4*(4+k)}, s[62:63]")
        tag4([16, 17, 18, 19])
        exec_set(-1, 0)
        a("buffer_store_dwordx4 v[16:19], v13, s[40:43], s39 offen sc1")
        a("s_mov_b64 exec, -1")
    def out_addr_setup():
        a("""v_and_b32 v12, 16, v0
        v_cmp_ne_u32 s[62:63], 0, v12
        v_lshlrev_b32 v13, 5, v3
        v_lshl_add_u32 v13, v2, 4, v13""")

    a("s_cmp_ge_u32 s2, 256\ns_cbranch_scc1 L_exit")
    stamp(0)
    a("""s_load_dwordx16 s[8:23], s[0:1], 0
    s_load_dwordx8 s[24:31], s[0:1], 64
    v_lshrrev_b32 v1, 6, v0
    v_and_b32 v0, 63, v0
    v_readfirstlane_b32 s3, v1
    s_and_b32 s4, s2, 7
    s_lshr_b32 s5, s2, 3
    v_lshrrev_b32 v2, 4, v0
    v_and_b32 v3, 15, v0
    s_mov_b32 s48, 0x05040100
    s_mov_b32 s49, 0x07060302
    s_mov_b32 s50, 0x07060500
    s_mov_b32 s51, 0x07060501
    s_mov_b32 s52, 0x07060502
    s_mov_b32 s53, 0x07060503
    s_mov_b32 s54, 0x0c0c0400
    s_mov_b32 s55, 0x04000c0c
    s_mov_b32 s58, 0xffffff00
    s_cmp_eq_u32 s3, 0
    s_cbranch_scc1 L_roleQ
    s_cmp_eq_u32 s3, 1
    s_cbranch_scc1 L_roleF
    s_cmp_lt_u32 s3, 4
    s_cbranch_scc1 L_roleO
    s_branch L_roleA""")

    def load_epoch():
        a("s_load_dword s6, s[30:31], 0")
        srd(40, 30, WS_SIZE)

    def issue_w():
        for tile in range(2):
            for i in range(8):
                r = 64 + (tile*8 + i)*4
                a(f"buffer_load_dwordx4 v[{r}:{r+3}], v50, s[32:35], s36 offen {NT}")
                if tile == 0 and i == 7:
                    a("s_add_u32 s36, s36, s96")
                elif not (tile == 1 and i == 7):
                    a("s_add_u32 s36, s36, s37")
    def x_load():
        srd(44, 8, 1024)
        a("buffer_load_dwordx4 v[4:7], v8, s[44:47], 0 offen")
    def w_voff(stride):
        a(f"""v_and_b32 v50, 56, v0
        v_mul_u32_u24 v50, {stride}, v50
        v_and_b32 v10, 7, v0
        v_lshl_add_u32 v50, v10, 4, v50
        v_lshlrev_b32 v8, 4, v0""")
    def layernorm(lds_xn):
        for k in range(4):
            a(f"v_lshlrev_b32 v{16+2*k}, 16, v{4+k}\nv_and_b32 v{17+2*k}, 0xffff0000, v{4+k}")
        a("""v_add_f32 v24, v16, v17
        v_add_f32 v25, v18, v19
        v_add_f32 v26, v20, v21
        v_add_f32 v27, v22, v23
        v_add_f32 v24, v24, v25
        v_add_f32 v26, v26, v27
        v_add_f32 v24, v24, v26""")
        wave_sum_to_sgpr(24, 60)
        a("v_mov_b32 v25, 0x3b000000\nv_mul_f32 v25, s60, v25")
        for k in range(8): a(f"v_sub_f32 v{32+k}, v{16+k}, v25")
        a("v_mul_f32 v24, v32, v32")
        for k in range(1, 8): a(f"v_fmac_f32 v24, v{32+k}, v{32+k}")
        wave_sum_to_sgpr(24, 61)
        a("""v_mov_b32 v26, 0x3b000000
        v_mul_f32 v26, s61, v26
        v_cvt_pk_bf16_f32 v28, v25, v26
        v_lshlrev_b32 v29, 16, v28
        v_and_b32 v30, 0xffff0000, v28
        v_add_f32 v30, 0x3727c5ac, v30
        v_cvt_pk_bf16_f32 v30, v30, v30
        v_and_b32 v30, 0xffff0000, v30
        v_sqrt_f32 v30, v30
        v_cvt_pk_bf16_f32 v30, v30, v30
        v_and_b32 v30, 0xffff0000, v30
        v_rcp_f32 v30, v30""")
        for k in range(8): a(f"v_sub_f32 v{32+k}, v{16+k}, v29")
        for k in range(4): a(f"v_cvt_pk_bf16_f32 v{40+k}, v{32+2*k}, v{33+2*k}")
        for k in range(4):
            a(f"v_lshlrev_b32 v{32+2*k}, 16, v{40+k}\nv_and_b32 v{33+2*k}, 0xffff0000, v{40+k}")
        for k in range(8): a(f"v_mul_f32 v{32+k}, v{32+k}, v30")
        for k in range(4): a(f"v_cvt_pk_bf16_f32 v{40+k}, v{32+2*k}, v{33+2*k}")
        a(f"ds_write_b128 v8, v[40:43] offset:{lds_xn}")
        a(f"""v_and_b32 v17, 1, v3
        v_lshlrev_b32 v17, 4, v17
        v_lshl_add_u32 v17, v2, 5, v17
        v_add_u32 v17, s38, v17
        ds_read_b128 v[8:11], v17 offset:{lds_xn}
        ds_read_b128 v[12:15], v17 offset:{lds_xn+128}""")
    def slice_epilogue():
        a("v_and_b32 v16, 8, v0\nv_cmp_ne_u32 s[62:63], 0, v16")
        a("""v_and_b32 v17, 7, v0
        v_lshlrev_b32 v17, 5, v17
        v_lshl_add_u32 v17, v16, 1, v17""")
        for k in range(4):
            a(f"v_cndmask_b32 v{20+k}, v{128+4*k}, v{128+4*(4+k)+1}, s[62:63]")
            a(f"v_cndmask_b32 v{24+k}, v{128+4*(4+k)}, v{128+4*k+1}, s[62:63]")
        for k in range(4):
            a(f"v_add_f32_dpp v{20+k}, v{24+k}, v{20+k} row_ror:8 row_mask:0xf bank_mask:0xf")
        tag4([20, 21, 22, 23])
        exec_set("0xffff", 0)
        dual_store("v[20:23]", "v17", "s39")
        a("s_mov_b64 exec, -1")

    a.label("L_roleQ")
    a("s_setprio 3")
    a(f"""s_and_b32 s96, s5, 7
    s_lshr_b32 s97, s5, 3
    s_lshl_b32 s36, s97, 20
    s_lshl_b32 s98, s4, 10
    s_add_u32 s36, s36, s98
    s_lshl_b32 s98, s96, 7
    s_add_u32 s36, s36, s98
    s_mov_b32 s37, 8192
    s_lshl_b32 s38, s97, 8
    s_lshl_b32 s39, s4, 13
    s_lshl_b32 s98, s97, 11
    s_add_u32 s39, s39, s98
    s_lshl_b32 s98, s96, 8
    s_add_u32 s39, s39, s98
    s_add_u32 s39, s39, {WS_QP}
    s_mov_b32 s96, {57*8192}""")
    w_voff(8192)
    a("s_waitcnt lgkmcnt(0)")
    x_load()
    srd(32, 14, 4194304)
    issue_w()
    a("s_barrier")
    load_epoch()
    a(f"v_mov_b32 v16, 0\nv_lshlrev_b32 v17, 2, v0")
    exec_set("0xffff", 0)
    a(f"ds_write_b32 v17, v16 offset:{L_FL}\ns_mov_b64 exec, -1")
    stamp(1)
    a("s_waitcnt vmcnt(16) lgkmcnt(0)")
    stamp(2)
    make_tag()
    layernorm(L_XNQ)
    stamp(3)
    a("s_waitcnt vmcnt(8) lgkmcnt(0)")
    gemv_tile(64, 8, 128, True)
    a("s_waitcnt vmcnt(0)")
    gemv_tile(96, 12, 128, False)
    slice_epilogue()
    stamp(4)
    a("s_barrier")
    a(f"""s_lshl_b32 s96, s4, 13
    s_add_u32 s96, s96, {WS_QP}
    s_add_u32 s97, s96, 4096
    v_lshlrev_b32 v8, 4, v0
    s_mov_b32 s59, 0""")
    slow_if_nofast(["s96", "s97"])
    a("s_barrier")
    stamp(5)
    def q_gather():
        for i in range(8):
            so = "s96" if i < 4 else "s97"
            a(f"buffer_load_dwordx4 v[{64+4*i}:{67+4*i}], v8, s[40:43], {so} offen offset:{(i&3)*1024} sc1")
    q_gather()
    a("s_barrier")
    a("s_branch L_qchk")
    a.label("L_qretry")
    q_gather()
    a.label("L_qchk")
    a("s_waitcnt vmcnt(0)")
    for i in range(8): check4(16, 64+4*i, 18, first=(i == 0))
    a("v_cmp_ne_u32 vcc, 0, v16")
    poll_tail("L_qok", "L_qretry", ["s96", "s97"])
    a.label("L_qok")
    stamp(6)
    count_stamp()
    for i in range(8): mask4(64+4*i)
    for half in range(2):
        for k in range(4):
            r0 = 64 + 4*half + k
            a(f"v_add_f32 v{r0}, v{r0}, v{r0+8}\nv_add_f32 v{r0+16}, v{r0+16}, v{r0+24}")
    for half in range(2):
        for k in range(4):
            r0 = 64 + 4*half + k
            a(f"v_add_f32 v{r0}, v{r0}, v{r0+16}")
    for half in range(2):
        a(f"v_cvt_pk_bf16_f32 v{20+2*half}, v{64+4*half}, v{65+4*half}\nv_cvt_pk_bf16_f32 v{21+2*half}, v{66+4*half}, v{67+4*half}")
    a(f"""v_lshlrev_b32 v17, 3, v0
    v_mov_b32 v18, 1
    v_mov_b32 v19, 0
    ds_write_b64 v17, v[20:21] offset:{L_Q}
    ds_write_b64 v17, v[22:23] offset:{L_Q+512}
    ds_write_b32 v19, v18 offset:{L_FL}""")
    stamp(7)
    a("s_branch L_end")

    a.label("L_roleF")
    a(f"""s_lshl_b32 s96, s4, 2
    s_mul_i32 s97, s4, 3
    s_add_u32 s97, s97, 4
    s_cmp_lt_u32 s4, 4
    s_cselect_b32 s96, s96, s97
    s_cselect_b32 s97, 32, 24
    s_cmp_lt_u32 s5, s97
    s_cselect_b32 s100, 1, 0
    s_lshr_b32 s97, s5, 3
    s_add_u32 s98, s96, s97
    s_lshr_b32 s99, s5, 1
    s_and_b32 s99, s99, 3
    s_mul_i32 s36, s99, {128*3584}
    s_lshl_b32 s98, s98, 7
    s_add_u32 s36, s36, s98
    s_mov_b32 s37, 3584
    s_lshl_b32 s38, s99, 8
    s_lshl_b32 s39, s4, 13
    s_and_b32 s101, s5, 1
    s_lshl_b32 s98, s101, 12
    s_add_u32 s39, s39, s98
    s_lshl_b32 s98, s99, 10
    s_add_u32 s39, s39, s98
    s_lshl_b32 s98, s97, 8
    s_add_u32 s39, s39, s98
    s_add_u32 s39, s39, {WS_GU}
    s_lshl_b32 s96, s96, 16
    s_lshr_b32 s97, s5, 2
    s_lshl_b32 s98, s97, 15
    s_add_u32 s98, s98, s96
    s_and_b32 s97, s5, 3
    s_lshl_b32 s99, s97, 8
    s_add_u32 s98, s98, s99
    s_add_u32 s99, s98, 4096
    s_mov_b32 s96, {57*3584}""")
    w_voff(3584)
    a("s_waitcnt lgkmcnt(0)")
    x_load()
    a("s_barrier")
    load_epoch()
    a("""s_cmp_eq_u32 s101, 0
    s_cselect_b32 s60, s20, s22
    s_cselect_b32 s61, s21, s23""")
    srd(32, 60, 1835008)
    a("s_waitcnt vmcnt(0) lgkmcnt(0)")
    make_tag()
    layernorm(L_XNF)
    srd(44, 24, 1835008)
    a("""v_lshlrev_b32 v51, 13, v2
    v_lshl_add_u32 v51, v3, 4, v51
    s_waitcnt lgkmcnt(0)
    s_setprio 1""")
    stamp(1)
    a("s_barrier\ns_barrier\ns_barrier")
    a("s_cmp_eq_u32 s100, 0\ns_cbranch_scc1 L_end")
    issue_w()
    for i in range(8):
        a(f"buffer_load_dwordx4 v[{168+4*i}:{171+4*i}], v51, s[44:47], s{98+(i>>2)} offen offset:{(i&3)*1024} {NT}")
    stamp(2)
    a(f"""v_lshrrev_b32 v56, 3, v3
    v_lshlrev_b32 v56, 12, v56
    v_and_b32 v57, 3, v3
    v_lshl_add_u32 v56, v57, 10, v56
    v_and_b32 v57, 4, v3
    v_lshl_add_u32 v56, v57, 2, v56
    v_lshl_add_u32 v56, v2, 5, v56
    s_lshl_b32 s98, s4, 13
    s_lshr_b32 s99, s5, 2
    s_lshl_b32 s96, s99, 7
    s_add_u32 s98, s98, s96
    s_add_u32 s98, s98, {WS_GU}""")
    slow_if_nofast(["s98"])
    a("s_waitcnt vmcnt(16)")
    gemv_tile(64, 8, 128, True)
    a("s_waitcnt vmcnt(8)")
    gemv_tile(96, 12, 128, False)
    slice_epilogue()
    stamp(3)
    a(f"""s_lshl_b32 s39, s4, 3
    s_add_u32 s39, s39, s99
    s_add_u32 s39, s39, 128
    s_lshl_b32 s39, s39, 11
    s_lshl_b32 s96, s97, 9
    s_add_u32 s39, s39, s96
    s_add_u32 s39, s39, {WS_OP}
    s_mov_b32 s59, 0""")
    out_addr_setup()
    nst = 2 if opt.fast else 1
    transpose_pairs(168, 64, nst)
    stamp(4)
    a.label("L_gpoll")
    a("buffer_load_dwordx4 v[40:43], v56, s[40:43], s98 offen sc1\ns_waitcnt vmcnt(0)")
    check4(12, 40, 14, first=True)
    a("v_cmp_ne_u32 vcc, 0, v12")
    poll_tail("L_gok", "L_gpoll", ["s98"])
    a.label("L_gok")
    stamp(5)
    count_stamp()
    mask4(40)
    for q in ("[1,0,3,2]", "[2,3,0,1]"):
        for k in range(4): a(f"v_add_f32_dpp v{40+k}, v{40+k}, v{40+k} quad_perm:{q} row_mask:0xf bank_mask:0xf")
    a("v_cvt_pk_bf16_f32 v44, v40, v41\nv_cvt_pk_bf16_f32 v45, v42, v43")
    a("v_lshlrev_b32 v40, 16, v44\nv_and_b32 v41, 0xffff0000, v44\nv_lshlrev_b32 v42, 16, v45\nv_and_b32 v43, 0xffff0000, v45")
    a("v_and_b32 v12, 8, v0\nv_cmp_ne_u32 vcc, 0, v12")
    for k in range(4): a(f"v_mov_b32_dpp v{44+k}, v{40+k} row_ror:8 row_mask:0xf bank_mask:0xf")
    for k in range(4):
        a(f"v_cndmask_b32 v{48+k}, v{40+k}, v{44+k}, vcc")
        a(f"v_cndmask_b32 v{52+k}, v{44+k}, v{40+k}, vcc")
    a("s_mov_b32 s60, 0x3d372713\ns_mov_b32 s61, 0xc0135761")
    for k in range(4): a(f"v_mul_f32 v{40+k}, v{48+k}, v{48+k}")
    for k in range(4): a(f"v_fma_f32 v{40+k}, v{40+k}, s60, 1.0")
    for k in range(4): a(f"v_mul_f32 v{40+k}, v{40+k}, v{48+k}")
    for k in range(4): a(f"v_mul_f32 v{40+k}, s61, v{40+k}")
    for k in range(4): a(f"v_exp_f32 v{40+k}, v{40+k}")
    for k in range(4): a(f"v_add_f32 v{40+k}, 1.0, v{40+k}")
    for k in range(4): a(f"v_rcp_f32 v{40+k}, v{40+k}")
    for k in range(4): a(f"v_mul_f32 v{40+k}, v{40+k}, v{48+k}")
    a("v_cvt_pk_bf16_f32 v44, v40, v41\nv_cvt_pk_bf16_f32 v45, v42, v43")
    a("v_lshlrev_b32 v40, 16, v44\nv_and_b32 v41, 0xffff0000, v44\nv_lshlrev_b32 v42, 16, v45\nv_and_b32 v43, 0xffff0000, v45")
    for k in range(4): a(f"v_mul_f32 v{40+k}, v{40+k}, v{52+k}")
    a("v_cvt_pk_bf16_f32 v44, v40, v41\nv_cvt_pk_bf16_f32 v45, v42, v43")
    a("v_and_b32 v12, 4, v0\nv_cmp_ne_u32 vcc, 0, v12")
    a("v_mov_b32_dpp v46, v44 row_ror:4 row_mask:0xf bank_mask:0xf\nv_mov_b32_dpp v47, v45 row_ror:4 row_mask:0xf bank_mask:0xf")
    a("""v_cndmask_b32 v24, v44, v46, vcc
    v_cndmask_b32 v25, v45, v47, vcc
    v_cndmask_b32 v26, v46, v44, vcc
    v_cndmask_b32 v27, v47, v45, vcc""")
    mfma_tile(64, 24, 128)
    publish_out()
    stamp(6)
    a("s_branch L_end")

    a.label("L_roleA")
    a("s_setprio 2")
    a(f"""s_sub_u32 s3, s3, 4
    s_lshl_b32 s96, s4, 24
    s_lshr_b32 s97, s5, 3
    s_lshl_b32 s97, s97, 18
    s_add_u32 s96, s96, s97
    s_and_b32 s97, s5, 7
    s_lshl_b32 s97, s97, 10
    s_add_u32 s96, s96, s97
    s_lshl_b32 s97, s3, 13
    s_add_u32 s96, s96, s97
    s_add_u32 s96, s96, {61440*256}
    s_add_u32 s97, s96, 131072
    v_and_b32 v8, 3, v3
    v_lshlrev_b32 v8, 15, v8
    v_lshrrev_b32 v9, 2, v3
    v_lshl_add_u32 v8, v9, 8, v8
    v_lshl_add_u32 v8, v2, 4, v8
    v_lshlrev_b32 v9, 8, v2
    v_lshl_add_u32 v9, v3, 4, v9
    s_waitcnt lgkmcnt(0)""")
    srd(32, 10, 134217728)
    srd(36, 12, 134217728)
    a("s_barrier")
    for T in range(2):
        for t in range(4):
            r = 64 + (T*4 + t)*4
            a(f"buffer_load_dwordx4 v[{r}:{r+3}], v8, s[32:35], s{96+T} offen offset:{t*64} {NT}")
    load_epoch()
    stamp(1)
    a("s_barrier")
    for i in range(8):
        r = 96 + i*4
        a(f"buffer_load_dwordx4 v[{r}:{r+3}], v9, s[36:39], s96 offen {NT}")
        if i < 7: a("s_add_u32 s96, s96, 32768")
    a("s_waitcnt lgkmcnt(0)")
    make_tag()
    a(f"""s_lshl_b32 s36, s4, 16
    s_lshl_b32 s37, s5, 11
    s_add_u32 s36, s36, s37
    s_lshl_b32 s37, s3, 9
    s_add_u32 s36, s36, s37
    s_add_u32 s36, s36, {WS_AP}
    v_lshlrev_b32 v52, 4, v0
    v_add_u32 v52, s36, v52
    s_lshl_b32 s36, s4, 2
    s_add_u32 s36, s36, s3
    s_lshl_b32 s36, s36, 9
    s_lshl_b32 s37, s5, 4
    s_add_u32 s36, s36, s37
    s_add_u32 s36, s36, {WS_ML}
    v_mov_b32 v53, s36
    v_cmp_eq_u32 s[62:63], 32, v0
    s_lshl_b32 s36, s3, 11
    v_lshlrev_b32 v54, 9, v2
    v_lshl_add_u32 v54, v3, 5, v54
    v_add_u32 v54, s36, v54
    s_lshl_b32 s36, s3, 3
    v_lshrrev_b32 v55, 2, v3
    v_lshlrev_b32 v55, 5, v55
    v_add_u32 v55, s36, v55
    v_cndmask_b32 v52, v52, v53, s[62:63]
    s_lshl_b32 s36, s3, 9
    v_and_b32 v56, 31, v0
    v_lshlrev_b32 v56, 4, v56
    v_add_u32 v56, s36, v56
    s_lshl_b32 s36, s3, 5
    v_mov_b32 v57, s36
    s_lshl_b32 s36, s3, 2
    v_mov_b32 v58, s36
    v_mov_b32 v59, 1
    v_lshrrev_b32 v60, 2, v3
    v_lshlrev_b32 v60, 8, v60
    v_lshl_add_u32 v60, v2, 4, v60""")
    stamp(2)
    a(f"s_waitcnt vmcnt({8-opt.kv})")
    stamp(3)
    a("s_barrier\ns_barrier")
    transpose_pairs(96, 160, 0)
    lds_wait("L_await_q", L_FL, 1)
    stamp(4)
    for t in range(4):
        a(f"ds_read_b128 v[{16+4*t}:{19+4*t}], v60 offset:{L_Q + t*64}")
    a("s_waitcnt lgkmcnt(0)")
    for t in range(4):
        for T in range(2):
            c = "0" if t == 0 else f"v[{32+4*T}:{35+4*T}]"
            a(f"v_mfma_f32_16x16x32_bf16 v[{32+4*T}:{35+4*T}], v[{64+(T*4+t)*4}:{67+(T*4+t)*4}], v[{16+4*t}:{19+4*t}], {c}")
    a("s_mov_b32 s60, 0x3db504f3")
    for k in range(4): a(f"v_cvt_pk_bf16_f32 v{40+k}, v{32+2*k}, v{33+2*k}")
    for k in range(4): a(f"v_lshlrev_b32 v{32+2*k}, 16, v{40+k}\nv_and_b32 v{33+2*k}, 0xffff0000, v{40+k}")
    for k in range(8): a(f"v_mul_f32 v{32+k}, s60, v{32+k}")
    for k in range(4): a(f"v_cvt_pk_bf16_f32 v{40+k}, v{32+2*k}, v{33+2*k}")
    for k in range(4): a(f"v_lshlrev_b32 v{32+2*k}, 16, v{40+k}\nv_and_b32 v{33+2*k}, 0xffff0000, v{40+k}")
    a("""v_max3_f32 v44, v32, v33, v34
    v_max3_f32 v45, v35, v36, v37
    v_max3_f32 v44, v44, v38, v39
    v_max_f32 v44, v44, v45
    v_mov_b32 v45, v44
    v_permlane16_swap_b32 v44, v45
    v_max_f32 v44, v44, v45
    v_mov_b32 v45, v44
    v_permlane32_swap_b32 v44, v45
    v_max_f32 v44, v44, v45
    s_mov_b32 s60, 0x3fb8aa3b
    v_mul_f32 v46, s60, v44""")
    for k in range(8): a(f"v_fma_f32 v{32+k}, v{32+k}, s60, -v46")
    for k in range(8): a(f"v_exp_f32 v{32+k}, v{32+k}")
    for k in range(4): a(f"v_cvt_pk_bf16_f32 v{40+k}, v{32+2*k}, v{33+2*k}")
    mfma_tile(160, 40, 128)
    a("""v_add_f32 v45, v32, v33
    v_add_f32 v46, v34, v35
    v_add_f32 v47, v36, v37
    v_add_f32 v48, v38, v39
    v_add_f32 v45, v45, v46
    v_add_f32 v47, v47, v48
    v_add_f32 v45, v45, v47
    v_mov_b32 v46, v45
    v_permlane16_swap_b32 v45, v46
    v_add_f32 v45, v45, v46
    v_mov_b32 v46, v45
    v_permlane32_swap_b32 v45, v46
    v_add_f32 v45, v45, v46""")
    stamp(5)
    for e in range(8): a(f"v_mov_b32 v{16+e}, v{128+4*e}")
    a(f"""ds_write_b128 v54, v[16:19] offset:{L_AO}
    ds_write_b128 v54, v[20:23] offset:{L_AO+16}""")
    exec_set("0x1111", 0)
    a(f"""ds_write_b64 v55, v[44:45] offset:{L_ST}
    s_mov_b64 exec, 1
    ds_write_b32 v58, v59 offset:{L_FL+16}
    s_mov_b64 exec, -1""")
    lds_wait("L_await_a", L_FL+16, 4)
    stamp(6)
    for w in range(4): a(f"ds_read_b128 v[{16+4*w}:{19+4*w}], v56 offset:{L_AO + w*2048}")
    a(f"ds_read_b128 v[32:35], v57 offset:{L_ST}\nds_read_b128 v[36:39], v57 offset:{L_ST+16}")
    a("""s_mov_b32 s60, 0x3fb8aa3b
    v_mov_b32 v42, 0
    s_waitcnt lgkmcnt(0)
    v_max3_f32 v40, v32, v34, v36
    v_max_f32 v40, v40, v38
    v_sub_f32 v32, v32, v40
    v_sub_f32 v34, v34, v40
    v_sub_f32 v36, v36, v40
    v_sub_f32 v38, v38, v40
    v_mul_f32 v32, s60, v32
    v_mul_f32 v34, s60, v34
    v_mul_f32 v36, s60, v36
    v_mul_f32 v38, s60, v38
    v_exp_f32 v32, v32
    v_exp_f32 v34, v34
    v_exp_f32 v36, v36
    v_exp_f32 v38, v38""")
    for k in range(4): a(f"v_mul_f32 v{44+k}, v32, v{16+k}")
    a("v_mul_f32 v41, v32, v33")
    for w, al in ((1, 34), (2, 36), (3, 38)):
        for k in range(4): a(f"v_fmac_f32 v{44+k}, v{al}, v{16+4*w+k}")
        a(f"v_fmac_f32 v41, v{al}, v{al+1}")
    a(f"""v_cndmask_b32 v44, v44, v40, s[62:63]
    v_cndmask_b32 v45, v45, v41, s[62:63]
    v_cndmask_b32 v46, v46, v42, s[62:63]
    v_cndmask_b32 v47, v47, v42, s[62:63]""")
    tag4([44, 45, 46, 47])
    exec_set(-1, 1)
    a("s_mov_b32 s60, 0")
    dual_store("v[44:47]", "v52", "s60")
    a(f"""s_mov_b64 exec, 1
    ds_write_b32 v58, v59 offset:{L_FL+32}
    s_mov_b64 exec, -1""")
    stamp(7)
    a("s_branch L_end")

    a.label("L_roleO")
    a(f"""s_sub_u32 s3, s3, 2
    s_lshr_b32 s96, s5, 2
    s_and_b32 s97, s5, 3
    s_lshl_b32 s98, s4, 19
    s_lshl_b32 s99, s96, 16
    s_add_u32 s98, s98, s99
    s_lshl_b32 s99, s3, 15
    s_add_u32 s98, s98, s99
    s_lshl_b32 s99, s97, 8
    s_add_u32 s98, s98, s99
    s_add_u32 s99, s98, 4096
    v_lshlrev_b32 v8, 13, v2
    v_lshl_add_u32 v8, v3, 4, v8
    s_lshl_b32 s100, s4, 3
    s_add_u32 s100, s100, s96
    s_waitcnt lgkmcnt(0)""")
    a("s_barrier")
    load_epoch()
    srd(32, 16, 4194304)
    a(f"""s_lshl_b32 s60, s4, 16
    s_lshr_b32 s61, s96, 1
    s_lshl_b32 s101, s61, 9
    s_add_u32 s60, s60, s101
    s_and_b32 s101, s96, 1
    s_lshl_b32 s101, s101, 8
    s_add_u32 s60, s60, s101
    s_lshl_b32 s101, s3, 7
    s_add_u32 s60, s60, s101
    s_add_u32 s36, s60, {WS_AP}
    s_add_u32 s37, s36, 32768
    v_lshlrev_b32 v9, 11, v3
    v_lshl_add_u32 v9, v2, 5, v9
    s_lshl_b32 s38, s4, 2
    s_add_u32 s38, s38, s61
    s_lshl_b32 s38, s38, 9
    s_add_u32 s38, s38, {WS_ML}
    v_lshlrev_b32 v11, 4, v3
    s_lshl_b32 s39, s100, 1
    s_add_u32 s39, s39, s3
    s_lshl_b32 s39, s39, 11
    s_lshl_b32 s61, s97, 9
    s_add_u32 s39, s39, s61
    s_add_u32 s39, s39, {WS_OP}""")
    slow_if_nofast(["s36", "s37", "s38"])
    a("s_waitcnt lgkmcnt(0)")
    make_tag()
    stamp(1)
    a("s_barrier\ns_barrier\ns_barrier")
    for i in range(8):
        a(f"buffer_load_dwordx4 v[{64+4*i}:{67+4*i}], v8, s[32:35], s{98+(i>>2)} offen offset:{(i&3)*1024} {NT}")
    stamp(2)
    transpose_pairs(64, 96, 0)
    stamp(3)
    lds_wait("L_await_pub", L_FL+32, 4)
    out_addr_setup()
    a("s_mov_b32 s59, 0")
    stamp(4)
    a.label("L_opoll")
    a("""buffer_load_dwordx4 v[32:35], v11, s[40:43], s38 offen sc1
    buffer_load_dwordx4 v[36:39], v11, s[40:43], s38 offen offset:256 sc1
    buffer_load_dwordx4 v[16:19], v9, s[40:43], s36 offen sc1
    buffer_load_dwordx4 v[20:23], v9, s[40:43], s36 offen offset:16 sc1
    buffer_load_dwordx4 v[24:27], v9, s[40:43], s37 offen sc1
    buffer_load_dwordx4 v[28:31], v9, s[40:43], s37 offen offset:16 sc1
    s_waitcnt vmcnt(0)""")
    for i in range(6): check4(12, 16+4*i, 14, first=(i == 0))
    a("v_cmp_ne_u32 vcc, 0, v12")
    poll_tail("L_ook", "L_opoll", ["s36", "s37", "s38"])
    a.label("L_ook")
    stamp(5)
    count_stamp()
    for i in range(6): mask4(16+4*i)
    a("v_max_f32 v44, v32, v36")
    for r in (8, 4, 2, 1): a(f"v_max_f32_dpp v44, v44, v44 row_ror:{r} row_mask:0xf bank_mask:0xf")
    a("""s_mov_b32 s60, 0x3fb8aa3b
    v_sub_f32 v32, v32, v44
    v_sub_f32 v36, v36, v44
    v_mul_f32 v32, s60, v32
    v_mul_f32 v36, s60, v36
    v_exp_f32 v32, v32
    v_exp_f32 v36, v36
    s_nop 0
    v_mul_f32 v45, v32, v33
    v_fmac_f32 v45, v36, v37""")
    for k in range(8): a(f"v_mul_f32 v{16+k}, v32, v{16+k}")
    for k in range(8): a(f"v_fmac_f32 v{16+k}, v36, v{24+k}")
    for r in (8, 4, 2, 1):
        a(f"v_add_f32_dpp v45, v45, v45 row_ror:{r} row_mask:0xf bank_mask:0xf")
        for k in range(8): a(f"v_add_f32_dpp v{16+k}, v{16+k}, v{16+k} row_ror:{r} row_mask:0xf bank_mask:0xf")
    a("v_rcp_f32 v45, v45")
    for k in range(8): a(f"v_mul_f32 v{16+k}, v{16+k}, v45")
    for k in range(4): a(f"v_cvt_pk_bf16_f32 v{24+k}, v{16+2*k}, v{17+2*k}")
    mfma_tile(96, 24, 128)
    publish_out()
    stamp(6)
    a("""s_cmp_eq_u32 s3, 0
    s_cbranch_scc0 L_end
    s_cmp_lt_u32 s2, 128
    s_cbranch_scc0 L_end""")
    srd(44, 8, 1024)
    a(f"""s_lshl_b32 s60, s4, 4
    s_add_u32 s60, s60, s5
    s_lshl_b32 s61, s60, 3
    v_mov_b32 v13, s61
    buffer_load_dwordx2 v[28:29], v13, s[44:47], 0 offen
    s_lshl_b32 s61, s60, 4
    s_add_u32 s61, s61, {WS_OP}
    s_add_u32 s98, s61, {64*2048}
    s_add_u32 s99, s61, {128*2048}
    v_lshlrev_b32 v12, 11, v0
    v_and_b32 v15, 7, v0
    v_cmp_gt_u32 vcc, 6, v15
    v_cmp_gt_u32 s[62:63], 32, v0
    s_or_b64 s[62:63], s[62:63], vcc
    v_cndmask_b32 v15, 0, v12, s[62:63]
    s_mov_b32 s59, 0""")
    a.label("L_fpoll")
    a("""buffer_load_dwordx4 v[16:19], v12, s[40:43], s61 offen sc1
    buffer_load_dwordx4 v[20:23], v12, s[40:43], s98 offen sc1
    buffer_load_dwordx4 v[24:27], v15, s[40:43], s99 offen sc1
    s_waitcnt vmcnt(0)""")
    check4(14, 16, 30, first=True)
    check4(14, 20, 30)
    check4(14, 24, 30)
    a("v_cmp_ne_u32 vcc, 0, v14")
    poll_tail("L_fok", "L_fpoll", [])
    a.label("L_fok")
    stamp(7)
    mask4(16); mask4(20); mask4(24)
    for k in range(4): a(f"v_add_f32 v{16+k}, v{16+k}, v{20+k}")
    for k in range(4): a(f"v_cndmask_b32 v{24+k}, 0, v{24+k}, s[62:63]")
    for k in range(4): a(f"v_add_f32 v{16+k}, v{16+k}, v{24+k}")
    for r in (8, 4, 2, 1):
        for k in range(4): a(f"v_add_f32_dpp v{16+k}, v{16+k}, v{16+k} row_ror:{r} row_mask:0xf bank_mask:0xf")
    for k in range(4): a(f"v_add_f32_dpp v{16+k}, v{16+k}, v{16+k} row_bcast:15 row_mask:0xa bank_mask:0xf")
    for k in range(4): a(f"v_add_f32_dpp v{16+k}, v{16+k}, v{16+k} row_bcast:31 row_mask:0xc bank_mask:0xf")
    a("""v_lshlrev_b32 v20, 16, v28
    v_and_b32 v21, 0xffff0000, v28
    v_lshlrev_b32 v22, 16, v29
    v_and_b32 v23, 0xffff0000, v29""")
    for k in range(4): a(f"v_add_f32 v{16+k}, v{16+k}, v{20+k}")
    a("v_cvt_pk_bf16_f32 v16, v16, v17\nv_cvt_pk_bf16_f32 v17, v18, v19")
    srd(44, 26, 1024)
    exec_set(0, "0x80000000")
    a("""buffer_store_dwordx2 v[16:17], v13, s[44:47], 0 offen
    s_cmp_eq_u32 s2, 0
    s_cbranch_scc0 L_noepoch
    v_mov_b32 v18, s7
    v_mov_b32 v19, 0
    buffer_store_dword v18, v19, s[40:43], 0 offen sc1""")
    a.label("L_noepoch")
    a("s_mov_b64 exec, -1")
    stamp(8)
    a.label("L_end")
    if opt.endwait: a("s_waitcnt vmcnt(0)")
    if opt.dbgstamps:
        a("""s_waitcnt lgkmcnt(0)
        s_cmp_eq_u32 s94, 2
        s_cbranch_scc0 L_exit
        s_and_b32 s96, s2, 0xfb
        s_cmp_eq_u32 s96, 0
        s_cbranch_scc0 L_exit
        s_lshl_b32 s96, s2, 3
        s_add_u32 s98, s28, s96
        s_addc_u32 s99, s29, 0
        s_mov_b64 exec, 1
        v_mov_b32 v4, 0""")
        for i in range(8):
            a(f"s_sub_u32 s96, s{64+2*(i+1)}, s64\nv_mov_b32 v2, s96\nglobal_store_dword v4, v2, s[98:99] offset:{4*i}\ns_nop 1")
        a("s_waitcnt vmcnt(0)\ns_branch L_exit")
    if opt.stamps and not opt.dbgstamps:
        a("""s_waitcnt lgkmcnt(0)
        s_lshl_b32 s96, s2, 4
        s_add_u32 s96, s96, s94
        s_lshl_b32 s96, s96, 7
        s_add_u32 s96, s96, 0x4000000
        s_add_u32 s98, s30, s96
        s_addc_u32 s99, s31, 0
        s_mov_b64 exec, 1
        v_mov_b32 v4, 0""")
        for i in range(NSTAMP):
            a(f"v_mov_b32 v2, s{64+2*i}\nv_mov_b32 v3, s{65+2*i}\nglobal_store_dwordx2 v4, v[2:3], s[98:99] offset:{8*i}\ns_nop 1")
        a("v_mov_b32 v2, 0x54414D50\nv_mov_b32 v3, 0x53\nglobal_store_dwordx2 v4, v[2:3], s[98:99] offset:120\ns_waitcnt vmcnt(0)")
    a.label("L_exit")
    a("s_endpgm")
    body = a.finish()
    if opt.stamps:
        init = "  s_mov_b32 s94, s3\n" + "".join(f"  s_mov_b64 s[{64+2*i}:{65+2*i}], 0\n" for i in range(1, NSTAMP))
        body = body.replace("  s_and_b32 s4, s2, 7\n", init + "  s_and_b32 s4, s2, 7\n", 1)
    hdr = f"""; Fused decode step: LayerNorm -> (GQA sliding-window attention + GEGLU FFN) -> residual sum.
; @launch grid=(256,1,1) block=(512,1,1) lds={LDS_BYTES}
.amdgcn_target "amdgcn-amd-amdhsa--gfx950"
.text
.globl {KNAME}
.p2align 8
.type {KNAME},@function
{KNAME}:
"""
    ftr = f""".section .rodata,"a"
.p2align 6
.amdhsa_kernel {KNAME}
  .amdhsa_next_free_vgpr 256
  .amdhsa_next_free_sgpr 102
  .amdhsa_accum_offset 256
  .amdhsa_group_segment_fixed_size 0
  .amdhsa_kernarg_size 96
  .amdhsa_user_sgpr_count 2
  .amdhsa_user_sgpr_kernarg_segment_ptr 1
  .amdhsa_system_sgpr_workgroup_id_x 1
  .amdhsa_float_denorm_mode_32 3
.end_amdhsa_kernel
"""
    return hdr + body + ftr, a.nnop

if __name__ == "__main__":
    import argparse
    ap = argparse.ArgumentParser()
    ap.add_argument("-o", default="out.s")
    ap.add_argument("--stamps", action="store_true")
    ap.add_argument("--nt", default="nt")
    ap.add_argument("--kv", type=int, default=2)
    ap.add_argument("--sleep", type=int, default=1)
    ap.add_argument("--nofast", action="store_true")
    ap.add_argument("--endwait", action="store_true")
    ap.add_argument("--dbgstamps", action="store_true")
    args = ap.parse_args()
    o = Opt(); o.stamps = args.stamps; o.nt = args.nt; o.kv = args.kv; o.sleep = args.sleep; o.fast = not args.nofast; o.endwait = args.endwait; o.dbgstamps = args.dbgstamps
    if o.dbgstamps: o.stamps = True
    text, nn = build(o)
    open(args.o, "w").write(text)
    print("wrote", args.o, "nops inserted:", nn, "lines:", text.count("\n"))
```

```python
import sys
from asmlib import Asm
KNAME = "parallel_sum__sliding_block_cached__glu_gated_geglu__decode_kernel"

WS_E  = 0
WS_QP = 0x10000
WS_GU = 0x20000
WS_ML = 0x30000
WS_AP = 0x40000
WS_OP = 0x180000
WS_SLOW = 0xC0000
WS_SIZE = 0x20000000
L_XNQ = 0
L_XNF = 1024
L_Q   = 2048
L_AO  = 4096
L_ST  = 12288
L_FL  = 12416
LDS_BYTES = 16384
SPIN_MAX = 1 << 14
NFAST = 48
NSTAMP = 15

class Opt:
    stamps = False
    nt = "nt"
    kv = 2
    sleep = 1
    fast = True
    endwait = False
    stouch = False
    dbgstamps = False
    dbgcnt = False

def build(opt):
    a = Asm()
    NT = opt.nt
    def stamp(i):
        if opt.stamps: a(f"s_memrealtime s[{64+2*i}:{65+2*i}]")
    def count_stamp():
        if opt.stamps: a("s_mov_b32 s92, s59\ns_mov_b32 s93, 0")
    def srd(dst, ptr, size):
        a(f"s_mov_b32 s{dst}, s{ptr}\ns_and_b32 s{dst+1}, s{ptr+1}, 0xffff\ns_mov_b32 s{dst+2}, {size}\ns_mov_b32 s{dst+3}, 0x20000")
    def exec_set(lo, hi):
        a(f"s_mov_b32 exec_lo, {lo}\ns_mov_b32 exec_hi, {hi}")
    def make_tag():
        a("""s_add_u32 s7, s6, 1
        s_mul_i32 s6, s7, 0x01010101
        s_xor_b32 s6, s6, 0x5c3a96f0
        s_and_b32 s56, s6, 0xffff
        s_and_b32 s57, s6, 0xffff0000
        v_mov_b32 v254, s6""")
    def tag4(regs):
        for k, r in enumerate(regs):
            a(f"v_perm_b32 v{r}, v{r}, v254, s{50+k}")
    def check4(acc, r, tmp, first=False):
        a(f"v_perm_b32 v{tmp}, v{r+1}, v{r}, s54")
        a(f"v_perm_b32 v{tmp+1}, v{r+3}, v{r+2}, s55")
        if first: a(f"v_xor_b32 v{acc}, s56, v{tmp}")
        else:     a(f"v_bitop3_b32 v{acc}, v{acc}, v{tmp}, s56 bitop3:0xf6")
        a(f"v_bitop3_b32 v{acc}, v{acc}, v{tmp+1}, s57 bitop3:0xf6")
    def dual_store(data, voff, soff):
        if opt.fast: a(f"buffer_store_dwordx4 {data}, {voff}, s[40:43], {soff} offen")
        a(f"s_add_u32 s61, {soff}, {WS_SLOW}")
        a(f"buffer_store_dwordx4 {data}, {voff}, s[40:43], s61 offen sc1")
    def slow_if_nofast(offs):
        if not opt.fast:
            for o in offs: a(f"s_add_u32 {o}, {o}, {WS_SLOW}")
    def poll_tail(ok, again, offs):
        a(f"s_add_u32 s59, s59, 1\ns_cbranch_vccz {ok}")
        if offs and opt.fast:
            a(f"s_cmp_eq_u32 s59, {NFAST}\ns_cselect_b32 s95, {WS_SLOW}, 0")
            for o in offs: a(f"s_add_u32 {o}, {o}, s95")
        a(f"s_cmp_gt_u32 s59, {SPIN_MAX}\ns_cbranch_scc1 {ok}")
        if opt.sleep: a(f"s_sleep {opt.sleep}")
        a(f"s_branch {again}")
    def lds_wait(label, off, nflags):
        a(f"v_mov_b32 v10, 0\ns_mov_b32 s59, 0")
        a.label(label)
        if nflags == 1:
            a(f"ds_read_b32 v12, v10 offset:{off}\ns_add_u32 s59, s59, 1\ns_waitcnt lgkmcnt(0)")
        else:
            a(f"""ds_read_b128 v[12:15], v10 offset:{off}
            s_add_u32 s59, s59, 1
            s_waitcnt lgkmcnt(0)
            v_and_b32 v12, v12, v13
            v_and_b32 v14, v14, v15
            v_and_b32 v12, v12, v14
            s_nop 0""")
        a(f"""v_readfirstlane_b32 s60, v12
        s_cmp_gt_u32 s59, {SPIN_MAX*16}
        s_cbranch_scc1 {label}_x
        s_cmp_eq_u32 s60, 0
        s_cbranch_scc1 {label}""")
        a.label(label + "_x")
    def mask4(r):
        for k in range(4): a(f"v_and_b32 v{r+k}, s58, v{r+k}")
    def wave_sum_to_sgpr(v, s):
        for r in (8, 4, 2, 1):
            a(f"v_add_f32_dpp v{v}, v{v}, v{v} row_ror:{r} row_mask:0xf bank_mask:0xf")
        a(f"v_add_f32_dpp v{v}, v{v}, v{v} row_bcast:15 row_mask:0xa bank_mask:0xf")
        a(f"v_add_f32_dpp v{v}, v{v}, v{v} row_bcast:31 row_mask:0xc bank_mask:0xf")
        a(f"v_readlane_b32 s{s}, v{v}, 63")
    def gemv_tile(R, A, acc, first, B0=160):
        def perms(e, B):
            w = e >> 1; sel = 49 if (e & 1) else 48
            for u in range(4):
                a(f"v_perm_b32 v{B+u}, v{R+(2*u+1)*4+w}, v{R+(2*u)*4+w}, s{sel}")
        perms(0, B0)
        for e in range(8):
            B = B0 + 4*(e & 1)
            if e < 7: perms(e+1, B0 + 4*((e+1) & 1))
            c = "0" if first else f"v[{acc+4*e}:{acc+4*e+3}]"
            a(f"v_mfma_f32_16x16x32_bf16 v[{acc+4*e}:{acc+4*e+3}], v[{A}:{A+3}], v[{B}:{B+3}], {c}")
    def transpose_pairs(R, D, total_after):
        for u in range(4):
            a(f"s_waitcnt vmcnt({6-2*u+total_after})")
            for e in range(8):
                w = e >> 1; sel = 49 if (e & 1) else 48
                a(f"v_perm_b32 v{D+4*e+u}, v{R+(2*u+1)*4+w}, v{R+(2*u)*4+w}, s{sel}")
    def mfma_tile(D, A, acc):
        for e in range(8):
            a(f"v_mfma_f32_16x16x32_bf16 v[{acc+4*e}:{acc+4*e+3}], v[{A}:{A+3}], v[{D+4*e}:{D+4*e+3}], 0")
    def publish_out():
        for k in range(4): a(f"v_cndmask_b32 v{16+k}, v{128+4*k}, v{128+4*(4+k)}, s[62:63]")
        tag4([16, 17, 18, 19])
        exec_set(-1, 0)
        a("buffer_store_dwordx4 v[16:19], v13, s[40:43], s39 offen sc1")
        a("s_mov_b64 exec, -1")
    def out_addr_setup():
        a("""v_and_b32 v12, 16, v0
        v_cmp_ne_u32 s[62:63], 0, v12
        v_lshlrev_b32 v13, 5, v3
        v_lshl_add_u32 v13, v2, 4, v13""")

    a("s_cmp_ge_u32 s2, 256\ns_cbranch_scc1 L_exit")
    stamp(0)
    a("""s_load_dwordx16 s[8:23], s[0:1], 0
    s_load_dwordx8 s[24:31], s[0:1], 64
    v_lshrrev_b32 v1, 6, v0
    v_and_b32 v0, 63, v0
    v_readfirstlane_b32 s3, v1
    s_and_b32 s4, s2, 7
    s_lshr_b32 s5, s2, 3
    v_lshrrev_b32 v2, 4, v0
    v_and_b32 v3, 15, v0
    s_mov_b32 s48, 0x05040100
    s_mov_b32 s49, 0x07060302
    s_mov_b32 s50, 0x07060500
    s_mov_b32 s51, 0x07060501
    s_mov_b32 s52, 0x07060502
    s_mov_b32 s53, 0x07060503
    s_mov_b32 s54, 0x0c0c0400
    s_mov_b32 s55, 0x04000c0c
    s_mov_b32 s58, 0xffffff00
    s_cmp_eq_u32 s3, 0
    s_cbranch_scc1 L_roleQ
    s_cmp_eq_u32 s3, 1
    s_cbranch_scc1 L_roleF
    s_cmp_lt_u32 s3, 4
    s_cbranch_scc1 L_roleO
    s_branch L_roleA""")

    def load_epoch():
        a("s_load_dword s6, s[30:31], 0")
        srd(40, 30, WS_SIZE)

    def issue_w():
        for tile in range(2):
            for i in range(8):
                r = 64 + (tile*8 + i)*4
                a(f"buffer_load_dwordx4 v[{r}:{r+3}], v50, s[32:35], s36 offen {NT}")
                if tile == 0 and i == 7:
                    a("s_add_u32 s36, s36, s96")
                elif not (tile == 1 and i == 7):
                    a("s_add_u32 s36, s36, s37")
    def x_load():
        srd(44, 8, 1024)
        a("buffer_load_dwordx4 v[4:7], v8, s[44:47], 0 offen")
    def w_voff(stride):
        a(f"""v_and_b32 v50, 56, v0
        v_mul_u32_u24 v50, {stride}, v50
        v_and_b32 v10, 7, v0
        v_lshl_add_u32 v50, v10, 4, v50
        v_lshlrev_b32 v8, 4, v0""")
    def layernorm(lds_xn):
        for k in range(4):
            a(f"v_lshlrev_b32 v{16+2*k}, 16, v{4+k}\nv_and_b32 v{17+2*k}, 0xffff0000, v{4+k}")
        a("""v_add_f32 v24, v16, v17
        v_add_f32 v25, v18, v19
        v_add_f32 v26, v20, v21
        v_add_f32 v27, v22, v23
        v_add_f32 v24, v24, v25
        v_add_f32 v26, v26, v27
        v_add_f32 v24, v24, v26""")
        wave_sum_to_sgpr(24, 60)
        a("v_mov_b32 v25, 0x3b000000\nv_mul_f32 v25, s60, v25")
        for k in range(8): a(f"v_sub_f32 v{32+k}, v{16+k}, v25")
        a("v_mul_f32 v24, v32, v32")
        for k in range(1, 8): a(f"v_fmac_f32 v24, v{32+k}, v{32+k}")
        wave_sum_to_sgpr(24, 61)
        a("""v_mov_b32 v26, 0x3b000000
        v_mul_f32 v26, s61, v26
        v_cvt_pk_bf16_f32 v28, v25, v26
        v_lshlrev_b32 v29, 16, v28
        v_and_b32 v30, 0xffff0000, v28
        v_add_f32 v30, 0x3727c5ac, v30
        v_cvt_pk_bf16_f32 v30, v30, v30
        v_and_b32 v30, 0xffff0000, v30
        v_sqrt_f32 v30, v30
        v_cvt_pk_bf16_f32 v30, v30, v30
        v_and_b32 v30, 0xffff0000, v30
        v_rcp_f32 v30, v30""")
        for k in range(8): a(f"v_sub_f32 v{32+k}, v{16+k}, v29")
        for k in range(4): a(f"v_cvt_pk_bf16_f32 v{40+k}, v{32+2*k}, v{33+2*k}")
        for k in range(4):
            a(f"v_lshlrev_b32 v{32+2*k}, 16, v{40+k}\nv_and_b32 v{33+2*k}, 0xffff0000, v{40+k}")
        for k in range(8): a(f"v_mul_f32 v{32+k}, v{32+k}, v30")
        for k in range(4): a(f"v_cvt_pk_bf16_f32 v{40+k}, v{32+2*k}, v{33+2*k}")
        a(f"ds_write_b128 v8, v[40:43] offset:{lds_xn}")
        a(f"""v_and_b32 v17, 1, v3
        v_lshlrev_b32 v17, 4, v17
        v_lshl_add_u32 v17, v2, 5, v17
        v_add_u32 v17, s38, v17
        ds_read_b128 v[8:11], v17 offset:{lds_xn}
        ds_read_b128 v[12:15], v17 offset:{lds_xn+128}""")
    def slice_epilogue():
        a("v_and_b32 v16, 8, v0\nv_cmp_ne_u32 s[62:63], 0, v16")
        a("""v_and_b32 v17, 7, v0
        v_lshlrev_b32 v17, 5, v17
        v_lshl_add_u32 v17, v16, 1, v17""")
        for k in range(4):
            a(f"v_cndmask_b32 v{20+k}, v{128+4*k}, v{128+4*(4+k)+1}, s[62:63]")
            a(f"v_cndmask_b32 v{24+k}, v{128+4*(4+k)}, v{128+4*k+1}, s[62:63]")
        for k in range(4):
            a(f"v_add_f32_dpp v{20+k}, v{24+k}, v{20+k} row_ror:8 row_mask:0xf bank_mask:0xf")
        tag4([20, 21, 22, 23])
        exec_set("0xffff", 0)
        dual_store("v[20:23]", "v17", "s39")
        a("s_mov_b64 exec, -1")

    a.label("L_roleQ")
    a("s_setprio 3")
    a(f"""s_and_b32 s96, s5, 7
    s_lshr_b32 s97, s5, 3
    s_lshl_b32 s36, s97, 20
    s_lshl_b32 s98, s4, 10
    s_add_u32 s36, s36, s98
    s_lshl_b32 s98, s96, 7
    s_add_u32 s36, s36, s98
    s_mov_b32 s37, 8192
    s_lshl_b32 s38, s97, 8
    s_lshl_b32 s39, s4, 13
    s_lshl_b32 s98, s97, 11
    s_add_u32 s39, s39, s98
    s_lshl_b32 s98, s96, 8
    s_add_u32 s39, s39, s98
    s_add_u32 s39, s39, {WS_QP}
    s_mov_b32 s96, {57*8192}""")
    w_voff(8192)
    a("s_waitcnt lgkmcnt(0)")
    x_load()
    srd(32, 14, 4194304)
    issue_w()
    a("s_barrier")
    load_epoch()
    a(f"v_mov_b32 v16, 0\nv_lshlrev_b32 v17, 2, v0")
    exec_set("0xffff", 0)
    a(f"ds_write_b32 v17, v16 offset:{L_FL}\ns_mov_b64 exec, -1")
    stamp(1)
    a("s_waitcnt vmcnt(16) lgkmcnt(0)")
    stamp(2)
    make_tag()
    layernorm(L_XNQ)
    stamp(3)
    a("s_waitcnt vmcnt(8) lgkmcnt(0)")
    gemv_tile(64, 8, 128, True)
    a("s_waitcnt vmcnt(0)")
    gemv_tile(96, 12, 128, False)
    slice_epilogue()
    stamp(4)
    a("s_barrier")
    a(f"""s_lshl_b32 s96, s4, 13
    s_add_u32 s96, s96, {WS_QP}
    s_add_u32 s97, s96, 4096
    v_lshlrev_b32 v8, 4, v0
    s_mov_b32 s59, 0""")
    slow_if_nofast(["s96", "s97"])
    a("s_barrier")
    stamp(5)
    def q_gather():
        for i in range(8):
            so = "s96" if i < 4 else "s97"
            a(f"buffer_load_dwordx4 v[{64+4*i}:{67+4*i}], v8, s[40:43], {so} offen offset:{(i&3)*1024} sc1")
    q_gather()
    a("s_barrier")
    a("s_branch L_qchk")
    a.label("L_qretry")
    q_gather()
    a.label("L_qchk")
    a("s_waitcnt vmcnt(0)")
    for i in range(8): check4(16, 64+4*i, 18, first=(i == 0))
    a("v_cmp_ne_u32 vcc, 0, v16")
    poll_tail("L_qok", "L_qretry", ["s96", "s97"])
    a.label("L_qok")
    stamp(6)
    count_stamp()
    for i in range(8): mask4(64+4*i)
    for half in range(2):
        for k in range(4):
            r0 = 64 + 4*half + k
            a(f"v_add_f32 v{r0}, v{r0}, v{r0+8}\nv_add_f32 v{r0+16}, v{r0+16}, v{r0+24}")
    for half in range(2):
        for k in range(4):
            r0 = 64 + 4*half + k
            a(f"v_add_f32 v{r0}, v{r0}, v{r0+16}")
    for half in range(2):
        a(f"v_cvt_pk_bf16_f32 v{20+2*half}, v{64+4*half}, v{65+4*half}\nv_cvt_pk_bf16_f32 v{21+2*half}, v{66+4*half}, v{67+4*half}")
    a(f"""v_lshlrev_b32 v17, 3, v0
    v_mov_b32 v18, 1
    v_mov_b32 v19, 0
    ds_write_b64 v17, v[20:21] offset:{L_Q}
    ds_write_b64 v17, v[22:23] offset:{L_Q+512}
    ds_write_b32 v19, v18 offset:{L_FL}""")
    stamp(7)
    a("s_branch L_end")

    a.label("L_roleF")
    a(f"""s_lshl_b32 s96, s4, 2
    s_mul_i32 s97, s4, 3
    s_add_u32 s97, s97, 4
    s_cmp_lt_u32 s4, 4
    s_cselect_b32 s96, s96, s97
    s_cselect_b32 s97, 32, 24
    s_cmp_lt_u32 s5, s97
    s_cselect_b32 s100, 1, 0
    s_lshr_b32 s97, s5, 3
    s_add_u32 s98, s96, s97
    s_lshr_b32 s99, s5, 1
    s_and_b32 s99, s99, 3
    s_mul_i32 s36, s99, {128*3584}
    s_lshl_b32 s98, s98, 7
    s_add_u32 s36, s36, s98
    s_mov_b32 s37, 3584
    s_lshl_b32 s38, s99, 8
    s_lshl_b32 s39, s4, 13
    s_and_b32 s101, s5, 1
    s_lshl_b32 s98, s101, 12
    s_add_u32 s39, s39, s98
    s_lshl_b32 s98, s99, 10
    s_add_u32 s39, s39, s98
    s_lshl_b32 s98, s97, 8
    s_add_u32 s39, s39, s98
    s_add_u32 s39, s39, {WS_GU}
    s_lshl_b32 s96, s96, 16
    s_lshr_b32 s97, s5, 2
    s_lshl_b32 s98, s97, 15
    s_add_u32 s98, s98, s96
    s_and_b32 s97, s5, 3
    s_lshl_b32 s99, s97, 8
    s_add_u32 s98, s98, s99
    s_add_u32 s99, s98, 4096
    s_mov_b32 s96, {57*3584}""")
    w_voff(3584)
    a("s_waitcnt lgkmcnt(0)")
    x_load()
    a("s_barrier")
    load_epoch()
    a("""s_cmp_eq_u32 s101, 0
    s_cselect_b32 s60, s20, s22
    s_cselect_b32 s61, s21, s23""")
    srd(32, 60, 1835008)
    a("s_waitcnt vmcnt(0) lgkmcnt(0)")
    make_tag()
    layernorm(L_XNF)
    srd(44, 24, 1835008)
    a("""v_lshlrev_b32 v51, 13, v2
    v_lshl_add_u32 v51, v3, 4, v51
    s_waitcnt lgkmcnt(0)
    s_setprio 1""")
    stamp(1)
    a("s_barrier\ns_barrier\ns_barrier")
    a("s_cmp_eq_u32 s100, 0\ns_cbranch_scc1 L_end")
    issue_w()
    for i in range(8):
        a(f"buffer_load_dwordx4 v[{168+4*i}:{171+4*i}], v51, s[44:47], s{98+(i>>2)} offen offset:{(i&3)*1024} {NT}")
    stamp(2)
    a(f"""v_lshrrev_b32 v56, 3, v3
    v_lshlrev_b32 v56, 12, v56
    v_and_b32 v57, 3, v3
    v_lshl_add_u32 v56, v57, 10, v56
    v_and_b32 v57, 4, v3
    v_lshl_add_u32 v56, v57, 2, v56
    v_lshl_add_u32 v56, v2, 5, v56
    s_lshl_b32 s98, s4, 13
    s_lshr_b32 s99, s5, 2
    s_lshl_b32 s96, s99, 7
    s_add_u32 s98, s98, s96
    s_add_u32 s98, s98, {WS_GU}""")
    slow_if_nofast(["s98"])
    a("s_waitcnt vmcnt(16)")
    gemv_tile(64, 8, 128, True)
    a("s_waitcnt vmcnt(8)")
    gemv_tile(96, 12, 128, False)
    slice_epilogue()
    stamp(3)
    a(f"""s_lshl_b32 s39, s4, 3
    s_add_u32 s39, s39, s99
    s_add_u32 s39, s39, 128
    s_lshl_b32 s39, s39, 11
    s_lshl_b32 s96, s97, 9
    s_add_u32 s39, s39, s96
    s_add_u32 s39, s39, {WS_OP}
    s_mov_b32 s59, 0""")
    out_addr_setup()
    nst = 2 if opt.fast else 1
    transpose_pairs(168, 64, nst)
    stamp(4)
    a.label("L_gpoll")
    a("buffer_load_dwordx4 v[40:43], v56, s[40:43], s98 offen sc1\ns_waitcnt vmcnt(0)")
    check4(12, 40, 14, first=True)
    a("v_cmp_ne_u32 vcc, 0, v12")
    poll_tail("L_gok", "L_gpoll", ["s98"])
    a.label("L_gok")
    stamp(5)
    count_stamp()
    mask4(40)
    for q in ("[1,0,3,2]", "[2,3,0,1]"):
        for k in range(4): a(f"v_add_f32_dpp v{40+k}, v{40+k}, v{40+k} quad_perm:{q} row_mask:0xf bank_mask:0xf")
    a("v_cvt_pk_bf16_f32 v44, v40, v41\nv_cvt_pk_bf16_f32 v45, v42, v43")
    a("v_lshlrev_b32 v40, 16, v44\nv_and_b32 v41, 0xffff0000, v44\nv_lshlrev_b32 v42, 16, v45\nv_and_b32 v43, 0xffff0000, v45")
    a("v_and_b32 v12, 8, v0\nv_cmp_ne_u32 vcc, 0, v12")
    for k in range(4): a(f"v_mov_b32_dpp v{44+k}, v{40+k} row_ror:8 row_mask:0xf bank_mask:0xf")
    for k in range(4):
        a(f"v_cndmask_b32 v{48+k}, v{40+k}, v{44+k}, vcc")
        a(f"v_cndmask_b32 v{52+k}, v{44+k}, v{40+k}, vcc")
    a("s_mov_b32 s60, 0x3d372713\ns_mov_b32 s61, 0xc0135761")
    for k in range(4): a(f"v_mul_f32 v{40+k}, v{48+k}, v{48+k}")
    for k in range(4): a(f"v_fma_f32 v{40+k}, v{40+k}, s60, 1.0")
    for k in range(4): a(f"v_mul_f32 v{40+k}, v{40+k}, v{48+k}")
    for k in range(4): a(f"v_mul_f32 v{40+k}, s61, v{40+k}")
    for k in range(4): a(f"v_exp_f32 v{40+k}, v{40+k}")
    for k in range(4): a(f"v_add_f32 v{40+k}, 1.0, v{40+k}")
    for k in range(4): a(f"v_rcp_f32 v{40+k}, v{40+k}")
    for k in range(4): a(f"v_mul_f32 v{40+k}, v{40+k}, v{48+k}")
    a("v_cvt_pk_bf16_f32 v44, v40, v41\nv_cvt_pk_bf16_f32 v45, v42, v43")
    a("v_lshlrev_b32 v40, 16, v44\nv_and_b32 v41, 0xffff0000, v44\nv_lshlrev_b32 v42, 16, v45\nv_and_b32 v43, 0xffff0000, v45")
    for k in range(4): a(f"v_mul_f32 v{40+k}, v{40+k}, v{52+k}")
    a("v_cvt_pk_bf16_f32 v44, v40, v41\nv_cvt_pk_bf16_f32 v45, v42, v43")
    a("v_and_b32 v12, 4, v0\nv_cmp_ne_u32 vcc, 0, v12")
    a("v_mov_b32_dpp v46, v44 row_ror:4 row_mask:0xf bank_mask:0xf\nv_mov_b32_dpp v47, v45 row_ror:4 row_mask:0xf bank_mask:0xf")
    a("""v_cndmask_b32 v24, v44, v46, vcc
    v_cndmask_b32 v25, v45, v47, vcc
    v_cndmask_b32 v26, v46, v44, vcc
    v_cndmask_b32 v27, v47, v45, vcc""")
    mfma_tile(64, 24, 128)
    publish_out()
    stamp(6)
    a("s_branch L_end")

    a.label("L_roleA")
    a("s_setprio 2")
    a(f"""s_sub_u32 s3, s3, 4
    s_lshl_b32 s96, s4, 24
    s_lshr_b32 s97, s5, 3
    s_lshl_b32 s97, s97, 18
    s_add_u32 s96, s96, s97
    s_and_b32 s97, s5, 7
    s_lshl_b32 s97, s97, 10
    s_add_u32 s96, s96, s97
    s_lshl_b32 s97, s3, 13
    s_add_u32 s96, s96, s97
    s_add_u32 s96, s96, {61440*256}
    s_add_u32 s97, s96, 131072
    v_and_b32 v8, 3, v3
    v_lshlrev_b32 v8, 15, v8
    v_lshrrev_b32 v9, 2, v3
    v_lshl_add_u32 v8, v9, 8, v8
    v_lshl_add_u32 v8, v2, 4, v8
    v_lshlrev_b32 v9, 8, v2
    v_lshl_add_u32 v9, v3, 4, v9
    s_waitcnt lgkmcnt(0)""")
    srd(32, 10, 134217728)
    srd(36, 12, 134217728)
    a("s_barrier")
    for T in range(2):
        for t in range(4):
            r = 64 + (T*4 + t)*4
            a(f"buffer_load_dwordx4 v[{r}:{r+3}], v8, s[32:35], s{96+T} offen offset:{t*64} {NT}")
    load_epoch()
    stamp(1)
    a("s_barrier")
    for i in range(8):
        r = 96 + i*4
        a(f"buffer_load_dwordx4 v[{r}:{r+3}], v9, s[36:39], s96 offen {NT}")
        if i < 7: a("s_add_u32 s96, s96, 32768")
    a("s_waitcnt lgkmcnt(0)")
    make_tag()
    a(f"""s_lshl_b32 s36, s4, 16
    s_lshl_b32 s37, s5, 11
    s_add_u32 s36, s36, s37
    s_lshl_b32 s37, s3, 9
    s_add_u32 s36, s36, s37
    s_add_u32 s36, s36, {WS_AP}
    v_lshlrev_b32 v52, 4, v0
    v_add_u32 v52, s36, v52
    s_lshl_b32 s36, s4, 2
    s_add_u32 s36, s36, s3
    s_lshl_b32 s36, s36, 9
    s_lshl_b32 s37, s5, 4
    s_add_u32 s36, s36, s37
    s_add_u32 s36, s36, {WS_ML}
    v_mov_b32 v53, s36
    v_cmp_eq_u32 s[62:63], 32, v0
    s_lshl_b32 s36, s3, 11
    v_lshlrev_b32 v54, 9, v2
    v_lshl_add_u32 v54, v3, 5, v54
    v_add_u32 v54, s36, v54
    s_lshl_b32 s36, s3, 3
    v_lshrrev_b32 v55, 2, v3
    v_lshlrev_b32 v55, 5, v55
    v_add_u32 v55, s36, v55
    v_cndmask_b32 v52, v52, v53, s[62:63]
    s_lshl_b32 s36, s3, 9
    v_and_b32 v56, 31, v0
    v_lshlrev_b32 v56, 4, v56
    v_add_u32 v56, s36, v56
    s_lshl_b32 s36, s3, 5
    v_mov_b32 v57, s36
    s_lshl_b32 s36, s3, 2
    v_mov_b32 v58, s36
    v_mov_b32 v59, 1
    v_lshrrev_b32 v60, 2, v3
    v_lshlrev_b32 v60, 8, v60
    v_lshl_add_u32 v60, v2, 4, v60""")
    stamp(2)
    a(f"s_waitcnt vmcnt({8-opt.kv})")
    stamp(3)
    a("s_barrier\ns_barrier")
    transpose_pairs(96, 160, 0)
    lds_wait("L_await_q", L_FL, 1)
    stamp(4)
    for t in range(4):
        a(f"ds_read_b128 v[{16+4*t}:{19+4*t}], v60 offset:{L_Q + t*64}")
    a("s_waitcnt lgkmcnt(0)")
    for t in range(4):
        for T in range(2):
            c = "0" if t == 0 else f"v[{32+4*T}:{35+4*T}]"
            a(f"v_mfma_f32_16x16x32_bf16 v[{32+4*T}:{35+4*T}], v[{64+(T*4+t)*4}:{67+(T*4+t)*4}], v[{16+4*t}:{19+4*t}], {c}")
    a("s_mov_b32 s60, 0x3db504f3")
    for k in range(4): a(f"v_cvt_pk_bf16_f32 v{40+k}, v{32+2*k}, v{33+2*k}")
    for k in range(4): a(f"v_lshlrev_b32 v{32+2*k}, 16, v{40+k}\nv_and_b32 v{33+2*k}, 0xffff0000, v{40+k}")
    for k in range(8): a(f"v_mul_f32 v{32+k}, s60, v{32+k}")
    for k in range(4): a(f"v_cvt_pk_bf16_f32 v{40+k}, v{32+2*k}, v{33+2*k}")
    for k in range(4): a(f"v_lshlrev_b32 v{32+2*k}, 16, v{40+k}\nv_and_b32 v{33+2*k}, 0xffff0000, v{40+k}")
    a("""v_max3_f32 v44, v32, v33, v34
    v_max3_f32 v45, v35, v36, v37
    v_max3_f32 v44, v44, v38, v39
    v_max_f32 v44, v44, v45
    v_mov_b32 v45, v44
    v_permlane16_swap_b32 v44, v45
    v_max_f32 v44, v44, v45
    v_mov_b32 v45, v44
    v_permlane32_swap_b32 v44, v45
    v_max_f32 v44, v44, v45
    s_mov_b32 s60, 0x3fb8aa3b
    v_mul_f32 v46, s60, v44""")
    for k in range(8): a(f"v_fma_f32 v{32+k}, v{32+k}, s60, -v46")
    for k in range(8): a(f"v_exp_f32 v{32+k}, v{32+k}")
    for k in range(4): a(f"v_cvt_pk_bf16_f32 v{40+k}, v{32+2*k}, v{33+2*k}")
    mfma_tile(160, 40, 128)
    a("""v_add_f32 v45, v32, v33
    v_add_f32 v46, v34, v35
    v_add_f32 v47, v36, v37
    v_add_f32 v48, v38, v39
    v_add_f32 v45, v45, v46
    v_add_f32 v47, v47, v48
    v_add_f32 v45, v45, v47
    v_mov_b32 v46, v45
    v_permlane16_swap_b32 v45, v46
    v_add_f32 v45, v45, v46
    v_mov_b32 v46, v45
    v_permlane32_swap_b32 v45, v46
    v_add_f32 v45, v45, v46""")
    stamp(5)
    for e in range(8): a(f"v_mov_b32 v{16+e}, v{128+4*e}")
    a(f"""ds_write_b128 v54, v[16:19] offset:{L_AO}
    ds_write_b128 v54, v[20:23] offset:{L_AO+16}""")
    exec_set("0x1111", 0)
    a(f"""ds_write_b64 v55, v[44:45] offset:{L_ST}
    s_mov_b64 exec, 1
    ds_write_b32 v58, v59 offset:{L_FL+16}
    s_mov_b64 exec, -1""")
    lds_wait("L_await_a", L_FL+16, 4)
    stamp(6)
    for w in range(4): a(f"ds_read_b128 v[{16+4*w}:{19+4*w}], v56 offset:{L_AO + w*2048}")
    a(f"ds_read_b128 v[32:35], v57 offset:{L_ST}\nds_read_b128 v[36:39], v57 offset:{L_ST+16}")
    a("""s_mov_b32 s60, 0x3fb8aa3b
    v_mov_b32 v42, 0
    s_waitcnt lgkmcnt(0)
    v_max3_f32 v40, v32, v34, v36
    v_max_f32 v40, v40, v38
    v_sub_f32 v32, v32, v40
    v_sub_f32 v34, v34, v40
    v_sub_f32 v36, v36, v40
    v_sub_f32 v38, v38, v40
    v_mul_f32 v32, s60, v32
    v_mul_f32 v34, s60, v34
    v_mul_f32 v36, s60, v36
    v_mul_f32 v38, s60, v38
    v_exp_f32 v32, v32
    v_exp_f32 v34, v34
    v_exp_f32 v36, v36
    v_exp_f32 v38, v38""")
    for k in range(4): a(f"v_mul_f32 v{44+k}, v32, v{16+k}")
    a("v_mul_f32 v41, v32, v33")
    for w, al in ((1, 34), (2, 36), (3, 38)):
        for k in range(4): a(f"v_fmac_f32 v{44+k}, v{al}, v{16+4*w+k}")
        a(f"v_fmac_f32 v41, v{al}, v{al+1}")
    a(f"""v_cndmask_b32 v44, v44, v40, s[62:63]
    v_cndmask_b32 v45, v45, v41, s[62:63]
    v_cndmask_b32 v46, v46, v42, s[62:63]
    v_cndmask_b32 v47, v47, v42, s[62:63]""")
    tag4([44, 45, 46, 47])
    exec_set(-1, 1)
    a("s_mov_b32 s60, 0")
    dual_store("v[44:47]", "v52", "s60")
    a(f"""s_mov_b64 exec, 1
    ds_write_b32 v58, v59 offset:{L_FL+32}
    s_mov_b64 exec, -1""")
    stamp(7)
    a("s_branch L_end")

    a.label("L_roleO")
    a(f"""s_sub_u32 s3, s3, 2
    s_lshr_b32 s96, s5, 2
    s_and_b32 s97, s5, 3
    s_lshl_b32 s98, s4, 19
    s_lshl_b32 s99, s96, 16
    s_add_u32 s98, s98, s99
    s_lshl_b32 s99, s3, 15
    s_add_u32 s98, s98, s99
    s_lshl_b32 s99, s97, 8
    s_add_u32 s98, s98, s99
    s_add_u32 s99, s98, 4096
    v_lshlrev_b32 v8, 13, v2
    v_lshl_add_u32 v8, v3, 4, v8
    s_lshl_b32 s100, s4, 3
    s_add_u32 s100, s100, s96
    s_waitcnt lgkmcnt(0)""")
    a("s_barrier")
    load_epoch()
    if opt.stouch:
        a(f"""s_load_dword s59, s[26:27], 0
        s_add_u32 s60, s16, s98
        s_addc_u32 s61, s17, 0
        s_load_dword s59, s[60:61], 0
        s_lshl_b32 s60, s4, 24
        s_add_u32 s60, s60, {61440*256}
        s_add_u32 s60, s12, s60
        s_addc_u32 s61, s13, 0
        s_load_dword s59, s[60:61], 0
        s_load_dword s59, s[20:21], 0
        s_load_dword s59, s[22:23], 0
        s_load_dword s59, s[24:25], 0
        s_add_u32 s60, s20, 1048576
        s_addc_u32 s61, s21, 0
        s_load_dword s59, s[60:61], 0
        s_add_u32 s60, s22, 1048576
        s_addc_u32 s61, s23, 0
        s_load_dword s59, s[60:61], 0
        s_add_u32 s60, s24, 1048576
        s_addc_u32 s61, s25, 0
        s_load_dword s59, s[60:61], 0
        s_waitcnt lgkmcnt(0)""")
    srd(32, 16, 4194304)
    a(f"""s_lshl_b32 s60, s4, 16
    s_lshr_b32 s61, s96, 1
    s_lshl_b32 s101, s61, 9
    s_add_u32 s60, s60, s101
    s_and_b32 s101, s96, 1
    s_lshl_b32 s101, s101, 8
    s_add_u32 s60, s60, s101
    s_lshl_b32 s101, s3, 7
    s_add_u32 s60, s60, s101
    s_add_u32 s36, s60, {WS_AP}
    s_add_u32 s37, s36, 32768
    v_lshlrev_b32 v9, 11, v3
    v_lshl_add_u32 v9, v2, 5, v9
    s_lshl_b32 s38, s4, 2
    s_add_u32 s38, s38, s61
    s_lshl_b32 s38, s38, 9
    s_add_u32 s38, s38, {WS_ML}
    v_lshlrev_b32 v11, 4, v3
    s_lshl_b32 s39, s100, 1
    s_add_u32 s39, s39, s3
    s_lshl_b32 s39, s39, 11
    s_lshl_b32 s61, s97, 9
    s_add_u32 s39, s39, s61
    s_add_u32 s39, s39, {WS_OP}""")
    slow_if_nofast(["s36", "s37", "s38"])
    a("s_waitcnt lgkmcnt(0)")
    make_tag()
    stamp(1)
    a("s_barrier\ns_barrier\ns_barrier")
    for i in range(8):
        a(f"buffer_load_dwordx4 v[{64+4*i}:{67+4*i}], v8, s[32:35], s{98+(i>>2)} offen offset:{(i&3)*1024} {NT}")
    stamp(2)
    transpose_pairs(64, 96, 0)
    stamp(3)
    lds_wait("L_await_pub", L_FL+32, 4)
    out_addr_setup()
    a("s_mov_b32 s59, 0")
    stamp(4)
    a.label("L_opoll")
    a("""buffer_load_dwordx4 v[32:35], v11, s[40:43], s38 offen sc1
    buffer_load_dwordx4 v[36:39], v11, s[40:43], s38 offen offset:256 sc1
    buffer_load_dwordx4 v[16:19], v9, s[40:43], s36 offen sc1
    buffer_load_dwordx4 v[20:23], v9, s[40:43], s36 offen offset:16 sc1
    buffer_load_dwordx4 v[24:27], v9, s[40:43], s37 offen sc1
    buffer_load_dwordx4 v[28:31], v9, s[40:43], s37 offen offset:16 sc1
    s_waitcnt vmcnt(0)""")
    for i in range(6): check4(12, 16+4*i, 14, first=(i == 0))
    a("v_cmp_ne_u32 vcc, 0, v12")
    poll_tail("L_ook", "L_opoll", ["s36", "s37", "s38"])
    a.label("L_ook")
    stamp(5)
    count_stamp()
    for i in range(6): mask4(16+4*i)
    a("v_max_f32 v44, v32, v36")
    for r in (8, 4, 2, 1): a(f"v_max_f32_dpp v44, v44, v44 row_ror:{r} row_mask:0xf bank_mask:0xf")
    a("""s_mov_b32 s60, 0x3fb8aa3b
    v_sub_f32 v32, v32, v44
    v_sub_f32 v36, v36, v44
    v_mul_f32 v32, s60, v32
    v_mul_f32 v36, s60, v36
    v_exp_f32 v32, v32
    v_exp_f32 v36, v36
    s_nop 0
    v_mul_f32 v45, v32, v33
    v_fmac_f32 v45, v36, v37""")
    for k in range(8): a(f"v_mul_f32 v{16+k}, v32, v{16+k}")
    for k in range(8): a(f"v_fmac_f32 v{16+k}, v36, v{24+k}")
    for r in (8, 4, 2, 1):
        a(f"v_add_f32_dpp v45, v45, v45 row_ror:{r} row_mask:0xf bank_mask:0xf")
        for k in range(8): a(f"v_add_f32_dpp v{16+k}, v{16+k}, v{16+k} row_ror:{r} row_mask:0xf bank_mask:0xf")
    a("v_rcp_f32 v45, v45")
    for k in range(8): a(f"v_mul_f32 v{16+k}, v{16+k}, v45")
    for k in range(4): a(f"v_cvt_pk_bf16_f32 v{24+k}, v{16+2*k}, v{17+2*k}")
    mfma_tile(96, 24, 128)
    publish_out()
    stamp(6)
    a("""s_cmp_eq_u32 s3, 0
    s_cbranch_scc0 L_end
    s_cmp_lt_u32 s2, 128
    s_cbranch_scc0 L_end""")
    srd(44, 8, 1024)
    a(f"""s_lshl_b32 s60, s4, 4
    s_add_u32 s60, s60, s5
    s_lshl_b32 s61, s60, 3
    v_mov_b32 v13, s61
    buffer_load_dwordx2 v[28:29], v13, s[44:47], 0 offen
    s_lshl_b32 s61, s60, 4
    s_add_u32 s61, s61, {WS_OP}
    s_add_u32 s98, s61, {64*2048}
    s_add_u32 s99, s61, {128*2048}
    v_lshlrev_b32 v12, 11, v0
    v_and_b32 v15, 7, v0
    v_cmp_gt_u32 vcc, 6, v15
    v_cmp_gt_u32 s[62:63], 32, v0
    s_or_b64 s[62:63], s[62:63], vcc
    v_cndmask_b32 v15, 0, v12, s[62:63]
    s_mov_b32 s59, 0""")
    a.label("L_fpoll")
    a("""buffer_load_dwordx4 v[16:19], v12, s[40:43], s61 offen sc1
    buffer_load_dwordx4 v[20:23], v12, s[40:43], s98 offen sc1
    buffer_load_dwordx4 v[24:27], v15, s[40:43], s99 offen sc1
    s_waitcnt vmcnt(0)""")
    check4(14, 16, 30, first=True)
    check4(14, 20, 30)
    check4(14, 24, 30)
    a("v_cmp_ne_u32 vcc, 0, v14")
    poll_tail("L_fok", "L_fpoll", [])
    a.label("L_fok")
    stamp(7)
    mask4(16); mask4(20); mask4(24)
    for k in range(4): a(f"v_add_f32 v{16+k}, v{16+k}, v{20+k}")
    for k in range(4): a(f"v_cndmask_b32 v{24+k}, 0, v{24+k}, s[62:63]")
    for k in range(4): a(f"v_add_f32 v{16+k}, v{16+k}, v{24+k}")
    for r in (8, 4, 2, 1):
        for k in range(4): a(f"v_add_f32_dpp v{16+k}, v{16+k}, v{16+k} row_ror:{r} row_mask:0xf bank_mask:0xf")
    for k in range(4): a(f"v_add_f32_dpp v{16+k}, v{16+k}, v{16+k} row_bcast:15 row_mask:0xa bank_mask:0xf")
    for k in range(4): a(f"v_add_f32_dpp v{16+k}, v{16+k}, v{16+k} row_bcast:31 row_mask:0xc bank_mask:0xf")
    a("""v_lshlrev_b32 v20, 16, v28
    v_and_b32 v21, 0xffff0000, v28
    v_lshlrev_b32 v22, 16, v29
    v_and_b32 v23, 0xffff0000, v29""")
    for k in range(4): a(f"v_add_f32 v{16+k}, v{16+k}, v{20+k}")
    a("v_cvt_pk_bf16_f32 v16, v16, v17\nv_cvt_pk_bf16_f32 v17, v18, v19")
    srd(44, 26, 1024)
    exec_set(0, "0x80000000")
    a("""buffer_store_dwordx2 v[16:17], v13, s[44:47], 0 offen
    s_cmp_eq_u32 s2, 0
    s_cbranch_scc0 L_noepoch
    v_mov_b32 v18, s7
    v_mov_b32 v19, 0
    buffer_store_dword v18, v19, s[40:43], 0 offen sc1""")
    a.label("L_noepoch")
    a("s_mov_b64 exec, -1")
    stamp(8)
    a.label("L_end")
    if opt.endwait: a("s_waitcnt vmcnt(0)")
    if opt.dbgstamps:
        a("""s_waitcnt lgkmcnt(0)
        s_cmp_eq_u32 s94, 2
        s_cbranch_scc0 L_exit
        s_and_b32 s96, s2, 0xfb
        s_cmp_eq_u32 s96, 0
        s_cbranch_scc0 L_exit
        s_lshl_b32 s96, s2, 3
        s_add_u32 s98, s28, s96
        s_addc_u32 s99, s29, 0
        s_mov_b64 exec, 1
        v_mov_b32 v4, 0""")
        for i in range(8):
            a(f"s_sub_u32 s96, s{64+2*(i+1)}, s64\nv_mov_b32 v2, s96\nglobal_store_dword v4, v2, s[98:99] offset:{4*i}\ns_nop 1")
        a("s_waitcnt vmcnt(0)\ns_branch L_exit")
    if opt.stamps and not opt.dbgstamps:
        a("""s_waitcnt lgkmcnt(0)
        s_lshl_b32 s96, s2, 4
        s_add_u32 s96, s96, s94
        s_lshl_b32 s96, s96, 7
        s_add_u32 s96, s96, 0x4000000
        s_add_u32 s98, s30, s96
        s_addc_u32 s99, s31, 0
        s_mov_b64 exec, 1
        v_mov_b32 v4, 0""")
        for i in range(NSTAMP):
            a(f"v_mov_b32 v2, s{64+2*i}\nv_mov_b32 v3, s{65+2*i}\nglobal_store_dwordx2 v4, v[2:3], s[98:99] offset:{8*i}\ns_nop 1")
        a("v_mov_b32 v2, 0x54414D50\nv_mov_b32 v3, 0x53\nglobal_store_dwordx2 v4, v[2:3], s[98:99] offset:120\ns_waitcnt vmcnt(0)")
    a.label("L_exit")
    a("s_endpgm")
    body = a.finish()
    if opt.stamps:
        init = "  s_mov_b32 s94, s3\n" + "".join(f"  s_mov_b64 s[{64+2*i}:{65+2*i}], 0\n" for i in range(1, NSTAMP))
        body = body.replace("  s_and_b32 s4, s2, 7\n", init + "  s_and_b32 s4, s2, 7\n", 1)
    hdr = f"""; Fused decode step: LayerNorm -> (GQA sliding-window attention + GEGLU FFN) -> residual sum.
; @launch grid=(256,1,1) block=(512,1,1) lds={LDS_BYTES}
.amdgcn_target "amdgcn-amd-amdhsa--gfx950"
.text
.globl {KNAME}
.p2align 8
.type {KNAME},@function
{KNAME}:
"""
    ftr = f""".section .rodata,"a"
.p2align 6
.amdhsa_kernel {KNAME}
  .amdhsa_next_free_vgpr 256
  .amdhsa_next_free_sgpr 102
  .amdhsa_accum_offset 256
  .amdhsa_group_segment_fixed_size 0
  .amdhsa_kernarg_size 96
  .amdhsa_user_sgpr_count 2
  .amdhsa_user_sgpr_kernarg_segment_ptr 1
  .amdhsa_system_sgpr_workgroup_id_x 1
  .amdhsa_float_denorm_mode_32 3
.end_amdhsa_kernel
"""
    return hdr + body + ftr, a.nnop

if __name__ == "__main__":
    import argparse
    ap = argparse.ArgumentParser()
    ap.add_argument("-o", default="out.s")
    ap.add_argument("--stamps", action="store_true")
    ap.add_argument("--nt", default="nt")
    ap.add_argument("--kv", type=int, default=2)
    ap.add_argument("--sleep", type=int, default=1)
    ap.add_argument("--nofast", action="store_true")
    ap.add_argument("--endwait", action="store_true")
    ap.add_argument("--stouch", action="store_true")
    ap.add_argument("--dbgstamps", action="store_true")
    args = ap.parse_args()
    o = Opt(); o.stamps = args.stamps; o.nt = args.nt; o.kv = args.kv; o.sleep = args.sleep; o.fast = not args.nofast; o.endwait = args.endwait; o.stouch = args.stouch; o.dbgstamps = args.dbgstamps
    if o.dbgstamps: o.stamps = True
    text, nn = build(o)
    open(args.o, "w").write(text)
    print("wrote", args.o, "nops inserted:", nn, "lines:", text.count("\n"))
```

```python
import sys
from asmlib import Asm
KNAME = "parallel_sum__sliding_block_cached__glu_gated_geglu__decode_kernel"

WS_E  = 0
WS_QP = 0x10000
WS_GU = 0x20000
WS_XI = 0x38000
WS_ML = 0x30000
WS_AP = 0x40000
WS_OP = 0x180000
WS_SLOW = 0xC0000
WS_SIZE = 0x20000000
L_XNQ = 0
L_XNF = 1024
L_Q   = 2048
L_AO  = 4096
L_ST  = 12288
L_OX  = 12544
L_FL  = 12416
LDS_BYTES = 16384
SPIN_MAX = 1 << 14
NFAST = 48
NSTAMP = 15

class Opt:
    stamps = False
    nt = "nt"
    kv = 2
    sleep = 1
    fast = True
    forceslow = False
    endwait = False
    stouch = False
    dbgstamps = False
    dbgcnt = False

def build(opt):
    a = Asm()
    NT = opt.nt
    def stamp(i):
        if opt.stamps: a(f"s_memrealtime s[{64+2*i}:{65+2*i}]")
    def count_stamp():
        if opt.stamps: a("s_mov_b32 s92, s59\ns_mov_b32 s93, 0")
    def srd(dst, ptr, size):
        a(f"s_mov_b32 s{dst}, s{ptr}\ns_and_b32 s{dst+1}, s{ptr+1}, 0xffff\ns_mov_b32 s{dst+2}, {size}\ns_mov_b32 s{dst+3}, 0x20000")
    def exec_set(lo, hi):
        a(f"s_mov_b32 exec_lo, {lo}\ns_mov_b32 exec_hi, {hi}")
    def make_tag():
        a("""s_add_u32 s7, s6, 1
        s_mul_i32 s6, s7, 0x01010101
        s_xor_b32 s6, s6, 0x5c3a96f0
        s_and_b32 s56, s6, 0xffff
        s_and_b32 s57, s6, 0xffff0000
        v_mov_b32 v254, s6""")
    def tag4(regs):
        for k, r in enumerate(regs):
            a(f"v_perm_b32 v{r}, v{r}, v254, s{50+k}")
    def check4(acc, r, tmp, first=False):
        a(f"v_perm_b32 v{tmp}, v{r+1}, v{r}, s54")
        a(f"v_perm_b32 v{tmp+1}, v{r+3}, v{r+2}, s55")
        if first: a(f"v_xor_b32 v{acc}, s56, v{tmp}")
        else:     a(f"v_bitop3_b32 v{acc}, v{acc}, v{tmp}, s56 bitop3:0xf6")
        a(f"v_bitop3_b32 v{acc}, v{acc}, v{tmp+1}, s57 bitop3:0xf6")
    def fast_store(data, voff, soff):
        a(f"buffer_store_dwordx4 {data}, {voff}, s[40:43], {soff} offen")
    def slow_store(data, voff, soff, lo, hi):
        exec_set(lo, hi)
        a(f"buffer_store_dwordx4 {data}, {voff}, s[40:43], {soff} offen sc1")
        a("s_mov_b64 exec, -1")
    def slow_if_nofast(offs):
        if opt.forceslow:
            for o in offs: a(f"s_add_u32 {o}, {o}, {WS_SLOW}")
    def poll_tail(ok, again, offs, own=None):
        a(f"s_add_u32 s59, s59, 1\ns_cbranch_vccz {ok}")
        if own is not None:
            a(f"s_cmp_eq_u32 s59, {NFAST//2}\ns_cbranch_scc0 {again}_ns")
            slow_store(*own)
            a.label(f"{again}_ns")
        if offs and not opt.forceslow:
            a(f"s_cmp_eq_u32 s59, {NFAST}\ns_cselect_b32 s95, {WS_SLOW}, 0")
            for o in offs: a(f"s_add_u32 {o}, {o}, s95")
        a(f"s_cmp_gt_u32 s59, {SPIN_MAX}\ns_cbranch_scc1 {ok}")
        if opt.sleep: a(f"s_sleep {opt.sleep}")
        a(f"s_branch {again}")
    def lds_wait(label, off, nflags):
        a(f"v_mov_b32 v10, 0\ns_mov_b32 s59, 0")
        a.label(label)
        if nflags == 1:
            a(f"ds_read_b32 v12, v10 offset:{off}\ns_add_u32 s59, s59, 1\ns_waitcnt lgkmcnt(0)")
        else:
            a(f"""ds_read_b128 v[12:15], v10 offset:{off}
            s_add_u32 s59, s59, 1
            s_waitcnt lgkmcnt(0)
            v_and_b32 v12, v12, v13
            v_and_b32 v14, v14, v15
            v_and_b32 v12, v12, v14
            s_nop 0""")
        a(f"""v_readfirstlane_b32 s60, v12
        s_cmp_gt_u32 s59, {SPIN_MAX*16}
        s_cbranch_scc1 {label}_x
        s_cmp_eq_u32 s60, 0
        s_cbranch_scc1 {label}""")
        a.label(label + "_x")
    def mask4(r):
        for k in range(4): a(f"v_and_b32 v{r+k}, s58, v{r+k}")
    def wave_sum_to_sgpr(v, s):
        for r in (8, 4, 2, 1):
            a(f"v_add_f32_dpp v{v}, v{v}, v{v} row_ror:{r} row_mask:0xf bank_mask:0xf")
        a(f"v_add_f32_dpp v{v}, v{v}, v{v} row_bcast:15 row_mask:0xa bank_mask:0xf")
        a(f"v_add_f32_dpp v{v}, v{v}, v{v} row_bcast:31 row_mask:0xc bank_mask:0xf")
        a(f"v_readlane_b32 s{s}, v{v}, 63")
    def gemv_tile(R, A, acc, first, B0=160):
        def perms(e, B):
            w = e >> 1; sel = 49 if (e & 1) else 48
            for u in range(4):
                a(f"v_perm_b32 v{B+u}, v{R+(2*u+1)*4+w}, v{R+(2*u)*4+w}, s{sel}")
        perms(0, B0)
        for e in range(8):
            B = B0 + 4*(e & 1)
            if e < 7: perms(e+1, B0 + 4*((e+1) & 1))
            c = "0" if first else f"v[{acc+4*e}:{acc+4*e+3}]"
            a(f"v_mfma_f32_16x16x32_bf16 v[{acc+4*e}:{acc+4*e+3}], v[{A}:{A+3}], v[{B}:{B+3}], {c}")
    def transpose_pairs(R, D, total_after):
        for u in range(4):
            a(f"s_waitcnt vmcnt({6-2*u+total_after})")
            for e in range(8):
                w = e >> 1; sel = 49 if (e & 1) else 48
                a(f"v_perm_b32 v{D+4*e+u}, v{R+(2*u+1)*4+w}, v{R+(2*u)*4+w}, s{sel}")
    def mfma_tile(D, A, acc):
        for e in range(8):
            a(f"v_mfma_f32_16x16x32_bf16 v[{acc+4*e}:{acc+4*e+3}], v[{A}:{A+3}], v[{D+4*e}:{D+4*e+3}], 0")
    def publish_out():
        for k in range(4): a(f"v_cndmask_b32 v{16+k}, v{128+4*k}, v{128+4*(4+k)}, s[62:63]")
        tag4([16, 17, 18, 19])
        exec_set(-1, 0)
        a("buffer_store_dwordx4 v[16:19], v13, s[40:43], s39 offen sc1")
        a("s_mov_b64 exec, -1")
    def row_select():
        for k in range(4): a(f"v_cndmask_b32 v{16+k}, v{128+4*k}, v{128+4*(4+k)}, s[62:63]")
    def row_to_lds(slot):
        row_select()
        a(f"""v_lshlrev_b32 v20, 4, v0
        v_mov_b32 v21, 0
        v_mov_b32 v22, 1""")
        exec_set(-1, 0)
        a(f"""ds_write_b128 v20, v[16:19] offset:{L_OX + 512*slot}
        ds_write_b32 v21, v22 offset:{L_FL + 56 + 4*slot}
        s_mov_b64 exec, -1""")
    def out_addr_setup():
        a("""v_and_b32 v12, 16, v0
        v_cmp_ne_u32 s[62:63], 0, v12
        v_lshlrev_b32 v13, 5, v3
        v_lshl_add_u32 v13, v2, 4, v13""")

    a("s_cmp_ge_u32 s2, 256\ns_cbranch_scc1 L_exit")
    stamp(0)
    a("""s_load_dwordx16 s[8:23], s[0:1], 0
    s_load_dwordx8 s[24:31], s[0:1], 64
    v_lshrrev_b32 v1, 6, v0
    v_and_b32 v0, 63, v0
    v_readfirstlane_b32 s3, v1
    s_and_b32 s4, s2, 7
    s_lshr_b32 s5, s2, 3
    v_lshrrev_b32 v2, 4, v0
    v_and_b32 v3, 15, v0
    s_mov_b32 s48, 0x05040100
    s_mov_b32 s49, 0x07060302
    s_mov_b32 s50, 0x07060500
    s_mov_b32 s51, 0x07060501
    s_mov_b32 s52, 0x07060502
    s_mov_b32 s53, 0x07060503
    s_mov_b32 s54, 0x0c0c0400
    s_mov_b32 s55, 0x04000c0c
    s_mov_b32 s58, 0xffffff00
    s_cmp_eq_u32 s3, 0
    s_cbranch_scc1 L_roleQ
    s_cmp_eq_u32 s3, 1
    s_cbranch_scc1 L_roleF
    s_cmp_lt_u32 s3, 4
    s_cbranch_scc1 L_roleO
    s_branch L_roleA""")

    def load_epoch():
        a("s_load_dword s6, s[30:31], 0")
        srd(40, 30, WS_SIZE)

    def issue_w():
        for tile in range(2):
            for i in range(8):
                r = 64 + (tile*8 + i)*4
                a(f"buffer_load_dwordx4 v[{r}:{r+3}], v50, s[32:35], s36 offen {NT}")
                if tile == 0 and i == 7:
                    a("s_add_u32 s36, s36, s96")
                elif not (tile == 1 and i == 7):
                    a("s_add_u32 s36, s36, s37")
    def x_load():
        srd(44, 8, 1024)
        a("buffer_load_dwordx4 v[4:7], v8, s[44:47], 0 offen")
    def w_voff(stride):
        a(f"""v_and_b32 v50, 56, v0
        v_mul_u32_u24 v50, {stride}, v50
        v_and_b32 v10, 7, v0
        v_lshl_add_u32 v50, v10, 4, v50
        v_lshlrev_b32 v8, 4, v0""")
    def layernorm(lds_xn):
        for k in range(4):
            a(f"v_lshlrev_b32 v{16+2*k}, 16, v{4+k}\nv_and_b32 v{17+2*k}, 0xffff0000, v{4+k}")
        a("""v_add_f32 v24, v16, v17
        v_add_f32 v25, v18, v19
        v_add_f32 v26, v20, v21
        v_add_f32 v27, v22, v23
        v_add_f32 v24, v24, v25
        v_add_f32 v26, v26, v27
        v_add_f32 v24, v24, v26""")
        wave_sum_to_sgpr(24, 60)
        a("v_mov_b32 v25, 0x3b000000\nv_mul_f32 v25, s60, v25")
        for k in range(8): a(f"v_sub_f32 v{32+k}, v{16+k}, v25")
        a("v_mul_f32 v24, v32, v32")
        for k in range(1, 8): a(f"v_fmac_f32 v24, v{32+k}, v{32+k}")
        wave_sum_to_sgpr(24, 61)
        a("""v_mov_b32 v26, 0x3b000000
        v_mul_f32 v26, s61, v26
        v_cvt_pk_bf16_f32 v28, v25, v26
        v_lshlrev_b32 v29, 16, v28
        v_and_b32 v30, 0xffff0000, v28
        v_add_f32 v30, 0x3727c5ac, v30
        v_cvt_pk_bf16_f32 v30, v30, v30
        v_and_b32 v30, 0xffff0000, v30
        v_sqrt_f32 v30, v30
        v_cvt_pk_bf16_f32 v30, v30, v30
        v_and_b32 v30, 0xffff0000, v30
        v_rcp_f32 v30, v30""")
        for k in range(8): a(f"v_sub_f32 v{32+k}, v{16+k}, v29")
        for k in range(4): a(f"v_cvt_pk_bf16_f32 v{40+k}, v{32+2*k}, v{33+2*k}")
        for k in range(4):
            a(f"v_lshlrev_b32 v{32+2*k}, 16, v{40+k}\nv_and_b32 v{33+2*k}, 0xffff0000, v{40+k}")
        for k in range(8): a(f"v_mul_f32 v{32+k}, v{32+k}, v30")
        for k in range(4): a(f"v_cvt_pk_bf16_f32 v{40+k}, v{32+2*k}, v{33+2*k}")
        a(f"ds_write_b128 v8, v[40:43] offset:{lds_xn}")
        a(f"""v_and_b32 v17, 1, v3
        v_lshlrev_b32 v17, 4, v17
        v_lshl_add_u32 v17, v2, 5, v17
        v_add_u32 v17, s38, v17
        ds_read_b128 v[8:11], v17 offset:{lds_xn}
        ds_read_b128 v[12:15], v17 offset:{lds_xn+128}""")
    def slice_epilogue(xi=False):
        a("v_and_b32 v16, 8, v0\nv_cmp_ne_u32 s[62:63], 0, v16")
        a("""v_and_b32 v17, 7, v0
        v_lshlrev_b32 v17, 5, v17
        v_lshl_add_u32 v17, v16, 1, v17""")
        for k in range(4):
            a(f"v_cndmask_b32 v{20+k}, v{128+4*k}, v{128+4*(4+k)+1}, s[62:63]")
            a(f"v_cndmask_b32 v{24+k}, v{128+4*(4+k)}, v{128+4*k+1}, s[62:63]")
        for k in range(4):
            a(f"v_add_f32_dpp v{200+k}, v{24+k}, v{20+k} row_ror:8 row_mask:0xf bank_mask:0xf")
        if xi:
            a(f"""s_getreg_b32 s60, hwreg(HW_REG_XCC_ID)
            s_and_b32 s60, s60, 0xffff
            s_lshl_b32 s37, s60, 8
            v_cmp_eq_u32 vcc, 16, v0
            v_mov_b32 v16, s37
            s_lshl_b32 s60, s4, 9
            s_lshl_b32 s61, s5, 4
            s_add_u32 s60, s60, s61
            s_add_u32 s60, s60, {WS_XI}
            s_sub_u32 s60, s60, s39
            v_mov_b32 v18, s60
            v_cndmask_b32 v17, v17, v18, vcc""")
            for k in range(4): a(f"v_cndmask_b32 v{200+k}, v{200+k}, v16, vcc")
        a("v_mov_b32 v204, v17")
        tag4([200, 201, 202, 203])
        exec_set("0x1ffff" if xi else "0xffff", 0)
        fast_store("v[200:203]", "v204", "s39")
        a("s_mov_b64 exec, -1")
        a(f"s_add_u32 s38, s39, {WS_SLOW}")

    a.label("L_roleQ")
    a("s_setprio 3")
    a(f"""s_and_b32 s96, s5, 7
    s_lshr_b32 s97, s5, 3
    s_lshl_b32 s36, s97, 20
    s_lshl_b32 s98, s4, 10
    s_add_u32 s36, s36, s98
    s_lshl_b32 s98, s96, 7
    s_add_u32 s36, s36, s98
    s_mov_b32 s37, 8192
    s_lshl_b32 s38, s97, 8
    s_lshl_b32 s39, s4, 13
    s_lshl_b32 s98, s97, 11
    s_add_u32 s39, s39, s98
    s_lshl_b32 s98, s96, 8
    s_add_u32 s39, s39, s98
    s_add_u32 s39, s39, {WS_QP}
    s_mov_b32 s96, {57*8192}""")
    w_voff(8192)
    a("s_waitcnt lgkmcnt(0)")
    x_load()
    srd(32, 14, 4194304)
    issue_w()
    a("s_barrier")
    load_epoch()
    a(f"v_mov_b32 v16, 0\nv_lshlrev_b32 v17, 2, v0")
    exec_set("0xffff", 0)
    a(f"ds_write_b32 v17, v16 offset:{L_FL}\ns_mov_b64 exec, -1")
    stamp(1)
    a("s_waitcnt vmcnt(16) lgkmcnt(0)")
    stamp(2)
    make_tag()
    layernorm(L_XNQ)
    stamp(3)
    a("s_waitcnt vmcnt(8) lgkmcnt(0)")
    gemv_tile(64, 8, 128, True)
    a("s_waitcnt vmcnt(0)")
    gemv_tile(96, 12, 128, False)
    slice_epilogue(xi=True)
    stamp(4)
    a("s_barrier")
    a(f"""s_lshl_b32 s96, s4, 13
    s_add_u32 s96, s96, {WS_QP}
    s_add_u32 s97, s96, 4096
    s_lshl_b32 s98, s4, 9
    s_add_u32 s98, s98, {WS_XI}
    v_lshlrev_b32 v8, 4, v0
    v_and_b32 v9, 31, v0
    v_lshlrev_b32 v9, 4, v9
    s_mov_b32 s59, 0""")
    slow_if_nofast(["s96", "s97", "s98"])
    a("s_barrier")
    stamp(5)
    def q_gather():
        for i in range(8):
            so = "s96" if i < 4 else "s97"
            a(f"buffer_load_dwordx4 v[{64+4*i}:{67+4*i}], v8, s[40:43], {so} offen offset:{(i&3)*1024} sc1")
        a("buffer_load_dwordx4 v[96:99], v9, s[40:43], s98 offen sc1")
    q_gather()
    a("s_barrier")
    a("s_branch L_qchk")
    a.label("L_qretry")
    q_gather()
    a.label("L_qchk")
    a("s_waitcnt vmcnt(0)")
    for i in range(9): check4(16, 64+4*i, 18, first=(i == 0))
    a("v_cmp_ne_u32 vcc, 0, v16")
    poll_tail("L_qok", "L_qretry", ["s96", "s97", "s98"], own=("v[200:203]", "v204", "s38", "0x1ffff", 0))
    a.label("L_qok")
    stamp(6)
    count_stamp()
    for i in range(8): mask4(64+4*i)
    a("""v_and_b32 v96, s58, v96
    v_cmp_ne_u32 vcc, s37, v96""")
    for half in range(2):
        for k in range(4):
            r0 = 64 + 4*half + k
            a(f"v_add_f32 v{r0}, v{r0}, v{r0+8}\nv_add_f32 v{r0+16}, v{r0+16}, v{r0+24}")
    a(f"""s_cmp_lg_u64 vcc, 0
    s_cselect_b32 s60, 3, 1
    s_cmp_ge_u32 s59, {NFAST//2}
    s_cselect_b32 s60, 3, s60""")
    for half in range(2):
        for k in range(4):
            r0 = 64 + 4*half + k
            a(f"v_add_f32 v{r0}, v{r0}, v{r0+16}")
    for half in range(2):
        a(f"v_cvt_pk_bf16_f32 v{20+2*half}, v{64+4*half}, v{65+4*half}\nv_cvt_pk_bf16_f32 v{21+2*half}, v{66+4*half}, v{67+4*half}")
    a(f"""v_lshlrev_b32 v17, 3, v0
    v_mov_b32 v18, s60
    v_mov_b32 v19, 0
    ds_write_b64 v17, v[20:21] offset:{L_Q}
    ds_write_b64 v17, v[22:23] offset:{L_Q+512}
    ds_write_b32 v19, v18 offset:{L_FL}
    s_cmp_eq_u32 s60, 1
    s_cbranch_scc1 L_qend""")
    slow_store("v[200:203]", "v204", "s38", "0x1ffff", 0)
    a.label("L_qend")
    stamp(7)
    a("s_branch L_end")

    a.label("L_roleF")
    a(f"""s_lshl_b32 s96, s4, 2
    s_mul_i32 s97, s4, 3
    s_add_u32 s97, s97, 4
    s_cmp_lt_u32 s4, 4
    s_cselect_b32 s96, s96, s97
    s_cselect_b32 s97, 32, 24
    s_cmp_lt_u32 s5, s97
    s_cselect_b32 s100, 1, 0
    s_lshr_b32 s97, s5, 3
    s_add_u32 s98, s96, s97
    s_lshr_b32 s99, s5, 1
    s_and_b32 s99, s99, 3
    s_mul_i32 s36, s99, {128*3584}
    s_lshl_b32 s98, s98, 7
    s_add_u32 s36, s36, s98
    s_mov_b32 s37, 3584
    s_lshl_b32 s38, s99, 8
    s_lshl_b32 s39, s4, 13
    s_and_b32 s101, s5, 1
    s_lshl_b32 s98, s101, 12
    s_add_u32 s39, s39, s98
    s_lshl_b32 s98, s99, 10
    s_add_u32 s39, s39, s98
    s_lshl_b32 s98, s97, 8
    s_add_u32 s39, s39, s98
    s_add_u32 s39, s39, {WS_GU}
    s_lshl_b32 s96, s96, 16
    s_lshr_b32 s97, s5, 2
    s_lshl_b32 s98, s97, 15
    s_add_u32 s98, s98, s96
    s_and_b32 s97, s5, 3
    s_lshl_b32 s99, s97, 8
    s_add_u32 s98, s98, s99
    s_add_u32 s99, s98, 4096
    s_mov_b32 s96, {57*3584}""")
    w_voff(3584)
    a("s_waitcnt lgkmcnt(0)")
    x_load()
    a("s_barrier")
    load_epoch()
    a("""s_cmp_eq_u32 s101, 0
    s_cselect_b32 s60, s20, s22
    s_cselect_b32 s61, s21, s23""")
    srd(32, 60, 1835008)
    a("s_waitcnt vmcnt(0) lgkmcnt(0)")
    make_tag()
    layernorm(L_XNF)
    srd(44, 24, 1835008)
    a("""v_lshlrev_b32 v51, 13, v2
    v_lshl_add_u32 v51, v3, 4, v51
    s_waitcnt lgkmcnt(0)
    s_setprio 1""")
    stamp(1)
    a("s_barrier\ns_barrier\ns_barrier")
    a("s_cmp_eq_u32 s100, 0\ns_cbranch_scc1 L_end")
    issue_w()
    for i in range(8):
        a(f"buffer_load_dwordx4 v[{168+4*i}:{171+4*i}], v51, s[44:47], s{98+(i>>2)} offen offset:{(i&3)*1024} {NT}")
    stamp(2)
    a(f"""v_lshrrev_b32 v56, 3, v3
    v_lshlrev_b32 v56, 12, v56
    v_and_b32 v57, 3, v3
    v_lshl_add_u32 v56, v57, 10, v56
    v_and_b32 v57, 4, v3
    v_lshl_add_u32 v56, v57, 2, v56
    v_lshl_add_u32 v56, v2, 5, v56
    s_lshl_b32 s98, s4, 13
    s_lshr_b32 s99, s5, 2
    s_lshl_b32 s96, s99, 7
    s_add_u32 s98, s98, s96
    s_add_u32 s98, s98, {WS_GU}""")
    slow_if_nofast(["s98"])
    a("s_waitcnt vmcnt(16)")
    gemv_tile(64, 8, 128, True)
    a("s_waitcnt vmcnt(8)")
    gemv_tile(96, 12, 128, False)
    slice_epilogue()
    stamp(3)
    a("s_mov_b32 s59, 0")
    out_addr_setup()
    nst = 1
    transpose_pairs(168, 64, nst)
    stamp(4)
    a.label("L_gpoll")
    a("buffer_load_dwordx4 v[40:43], v56, s[40:43], s98 offen sc1\ns_waitcnt vmcnt(0)")
    check4(12, 40, 14, first=True)
    a("v_cmp_ne_u32 vcc, 0, v12")
    poll_tail("L_gok", "L_gpoll", ["s98"], own=("v[200:203]", "v204", "s38", "0xffff", 0))
    a.label("L_gok")
    stamp(5)
    count_stamp()
    mask4(40)
    for q in ("[1,0,3,2]", "[2,3,0,1]"):
        for k in range(4): a(f"v_add_f32_dpp v{40+k}, v{40+k}, v{40+k} quad_perm:{q} row_mask:0xf bank_mask:0xf")
    a("v_cvt_pk_bf16_f32 v44, v40, v41\nv_cvt_pk_bf16_f32 v45, v42, v43")
    a("v_lshlrev_b32 v40, 16, v44\nv_and_b32 v41, 0xffff0000, v44\nv_lshlrev_b32 v42, 16, v45\nv_and_b32 v43, 0xffff0000, v45")
    a("v_and_b32 v12, 8, v0\nv_cmp_ne_u32 vcc, 0, v12")
    for k in range(4): a(f"v_mov_b32_dpp v{44+k}, v{40+k} row_ror:8 row_mask:0xf bank_mask:0xf")
    for k in range(4):
        a(f"v_cndmask_b32 v{48+k}, v{40+k}, v{44+k}, vcc")
        a(f"v_cndmask_b32 v{52+k}, v{44+k}, v{40+k}, vcc")
    a("s_mov_b32 s60, 0x3d372713\ns_mov_b32 s61, 0xc0135761")
    for k in range(4): a(f"v_mul_f32 v{40+k}, v{48+k}, v{48+k}")
    for k in range(4): a(f"v_fma_f32 v{40+k}, v{40+k}, s60, 1.0")
    for k in range(4): a(f"v_mul_f32 v{40+k}, v{40+k}, v{48+k}")
    for k in range(4): a(f"v_mul_f32 v{40+k}, s61, v{40+k}")
    for k in range(4): a(f"v_exp_f32 v{40+k}, v{40+k}")
    for k in range(4): a(f"v_add_f32 v{40+k}, 1.0, v{40+k}")
    for k in range(4): a(f"v_rcp_f32 v{40+k}, v{40+k}")
    for k in range(4): a(f"v_mul_f32 v{40+k}, v{40+k}, v{48+k}")
    a("v_cvt_pk_bf16_f32 v44, v40, v41\nv_cvt_pk_bf16_f32 v45, v42, v43")
    a("v_lshlrev_b32 v40, 16, v44\nv_and_b32 v41, 0xffff0000, v44\nv_lshlrev_b32 v42, 16, v45\nv_and_b32 v43, 0xffff0000, v45")
    for k in range(4): a(f"v_mul_f32 v{40+k}, v{40+k}, v{52+k}")
    a("v_cvt_pk_bf16_f32 v44, v40, v41\nv_cvt_pk_bf16_f32 v45, v42, v43")
    a("v_and_b32 v12, 4, v0\nv_cmp_ne_u32 vcc, 0, v12")
    a("v_mov_b32_dpp v46, v44 row_ror:4 row_mask:0xf bank_mask:0xf\nv_mov_b32_dpp v47, v45 row_ror:4 row_mask:0xf bank_mask:0xf")
    a("""v_cndmask_b32 v24, v44, v46, vcc
    v_cndmask_b32 v25, v45, v47, vcc
    v_cndmask_b32 v26, v46, v44, vcc
    v_cndmask_b32 v27, v47, v45, vcc""")
    mfma_tile(64, 24, 128)
    row_to_lds(1)
    stamp(6)
    a(f"v_mov_b32 v10, 0\nds_read_b32 v12, v10 offset:{L_FL}\ns_waitcnt lgkmcnt(0)\nv_readfirstlane_b32 s60, v12\ns_cmp_eq_u32 s60, 1\ns_cbranch_scc1 L_end")
    slow_store("v[200:203]", "v204", "s38", "0xffff", 0)
    a("s_branch L_end")

    a.label("L_roleA")
    a("s_setprio 2")
    a(f"""s_sub_u32 s3, s3, 4
    s_lshl_b32 s96, s4, 24
    s_lshr_b32 s97, s5, 3
    s_lshl_b32 s97, s97, 18
    s_add_u32 s96, s96, s97
    s_and_b32 s97, s5, 7
    s_lshl_b32 s97, s97, 10
    s_add_u32 s96, s96, s97
    s_lshl_b32 s97, s3, 13
    s_add_u32 s96, s96, s97
    s_add_u32 s96, s96, {61440*256}
    s_add_u32 s97, s96, 131072
    v_and_b32 v8, 3, v3
    v_lshlrev_b32 v8, 15, v8
    v_lshrrev_b32 v9, 2, v3
    v_lshl_add_u32 v8, v9, 8, v8
    v_lshl_add_u32 v8, v2, 4, v8
    v_lshlrev_b32 v9, 8, v2
    v_lshl_add_u32 v9, v3, 4, v9
    s_waitcnt lgkmcnt(0)""")
    srd(32, 10, 134217728)
    srd(36, 12, 134217728)
    a("s_barrier")
    for T in range(2):
        for t in range(4):
            r = 64 + (T*4 + t)*4
            a(f"buffer_load_dwordx4 v[{r}:{r+3}], v8, s[32:35], s{96+T} offen offset:{t*64} {NT}")
    load_epoch()
    stamp(1)
    a("s_barrier")
    for i in range(8):
        r = 96 + i*4
        a(f"buffer_load_dwordx4 v[{r}:{r+3}], v9, s[36:39], s96 offen {NT}")
        if i < 7: a("s_add_u32 s96, s96, 32768")
    a("s_waitcnt lgkmcnt(0)")
    make_tag()
    a(f"""s_lshl_b32 s36, s4, 16
    s_lshl_b32 s37, s5, 11
    s_add_u32 s36, s36, s37
    s_lshl_b32 s37, s3, 9
    s_add_u32 s36, s36, s37
    s_add_u32 s36, s36, {WS_AP}
    v_lshlrev_b32 v52, 4, v0
    v_add_u32 v52, s36, v52
    s_lshl_b32 s36, s4, 2
    s_add_u32 s36, s36, s3
    s_lshl_b32 s36, s36, 9
    s_lshl_b32 s37, s5, 4
    s_add_u32 s36, s36, s37
    s_add_u32 s36, s36, {WS_ML}
    v_mov_b32 v53, s36
    v_cmp_eq_u32 s[62:63], 32, v0
    s_lshl_b32 s36, s3, 11
    v_lshlrev_b32 v54, 9, v2
    v_lshl_add_u32 v54, v3, 5, v54
    v_add_u32 v54, s36, v54
    s_lshl_b32 s36, s3, 3
    v_lshrrev_b32 v55, 2, v3
    v_lshlrev_b32 v55, 5, v55
    v_add_u32 v55, s36, v55
    v_cndmask_b32 v52, v52, v53, s[62:63]
    s_lshl_b32 s36, s3, 9
    v_and_b32 v56, 31, v0
    v_lshlrev_b32 v56, 4, v56
    v_add_u32 v56, s36, v56
    s_lshl_b32 s36, s3, 5
    v_mov_b32 v57, s36
    s_lshl_b32 s36, s3, 2
    v_mov_b32 v58, s36
    v_mov_b32 v59, 1
    v_lshrrev_b32 v60, 2, v3
    v_lshlrev_b32 v60, 8, v60
    v_lshl_add_u32 v60, v2, 4, v60""")
    stamp(2)
    a(f"s_waitcnt vmcnt({8-opt.kv})")
    stamp(3)
    a("s_barrier\ns_barrier")
    transpose_pairs(96, 160, 0)
    lds_wait("L_await_q", L_FL, 1)
    a("s_mov_b32 s98, s60")
    stamp(4)
    for t in range(4):
        a(f"ds_read_b128 v[{16+4*t}:{19+4*t}], v60 offset:{L_Q + t*64}")
    a("s_waitcnt lgkmcnt(0)")
    for t in range(4):
        for T in range(2):
            c = "0" if t == 0 else f"v[{32+4*T}:{35+4*T}]"
            a(f"v_mfma_f32_16x16x32_bf16 v[{32+4*T}:{35+4*T}], v[{64+(T*4+t)*4}:{67+(T*4+t)*4}], v[{16+4*t}:{19+4*t}], {c}")
    a("s_mov_b32 s60, 0x3db504f3")
    for k in range(4): a(f"v_cvt_pk_bf16_f32 v{40+k}, v{32+2*k}, v{33+2*k}")
    for k in range(4): a(f"v_lshlrev_b32 v{32+2*k}, 16, v{40+k}\nv_and_b32 v{33+2*k}, 0xffff0000, v{40+k}")
    for k in range(8): a(f"v_mul_f32 v{32+k}, s60, v{32+k}")
    for k in range(4): a(f"v_cvt_pk_bf16_f32 v{40+k}, v{32+2*k}, v{33+2*k}")
    for k in range(4): a(f"v_lshlrev_b32 v{32+2*k}, 16, v{40+k}\nv_and_b32 v{33+2*k}, 0xffff0000, v{40+k}")
    a("""v_max3_f32 v44, v32, v33, v34
    v_max3_f32 v45, v35, v36, v37
    v_max3_f32 v44, v44, v38, v39
    v_max_f32 v44, v44, v45
    v_mov_b32 v45, v44
    v_permlane16_swap_b32 v44, v45
    v_max_f32 v44, v44, v45
    v_mov_b32 v45, v44
    v_permlane32_swap_b32 v44, v45
    v_max_f32 v44, v44, v45
    s_mov_b32 s60, 0x3fb8aa3b
    v_mul_f32 v46, s60, v44""")
    for k in range(8): a(f"v_fma_f32 v{32+k}, v{32+k}, s60, -v46")
    for k in range(8): a(f"v_exp_f32 v{32+k}, v{32+k}")
    for k in range(4): a(f"v_cvt_pk_bf16_f32 v{40+k}, v{32+2*k}, v{33+2*k}")
    mfma_tile(160, 40, 128)
    a("""v_add_f32 v45, v32, v33
    v_add_f32 v46, v34, v35
    v_add_f32 v47, v36, v37
    v_add_f32 v48, v38, v39
    v_add_f32 v45, v45, v46
    v_add_f32 v47, v47, v48
    v_add_f32 v45, v45, v47
    v_mov_b32 v46, v45
    v_permlane16_swap_b32 v45, v46
    v_add_f32 v45, v45, v46
    v_mov_b32 v46, v45
    v_permlane32_swap_b32 v45, v46
    v_add_f32 v45, v45, v46""")
    stamp(5)
    for e in range(8): a(f"v_mov_b32 v{16+e}, v{128+4*e}")
    a(f"""ds_write_b128 v54, v[16:19] offset:{L_AO}
    ds_write_b128 v54, v[20:23] offset:{L_AO+16}""")
    exec_set("0x1111", 0)
    a(f"""ds_write_b64 v55, v[44:45] offset:{L_ST}
    s_mov_b64 exec, 1
    ds_write_b32 v58, v59 offset:{L_FL+16}
    s_mov_b64 exec, -1""")
    lds_wait("L_await_a", L_FL+16, 4)
    stamp(6)
    for w in range(4): a(f"ds_read_b128 v[{16+4*w}:{19+4*w}], v56 offset:{L_AO + w*2048}")
    a(f"ds_read_b128 v[32:35], v57 offset:{L_ST}\nds_read_b128 v[36:39], v57 offset:{L_ST+16}")
    a("""s_mov_b32 s60, 0x3fb8aa3b
    v_mov_b32 v42, 0
    s_waitcnt lgkmcnt(0)
    v_max3_f32 v40, v32, v34, v36
    v_max_f32 v40, v40, v38
    v_sub_f32 v32, v32, v40
    v_sub_f32 v34, v34, v40
    v_sub_f32 v36, v36, v40
    v_sub_f32 v38, v38, v40
    v_mul_f32 v32, s60, v32
    v_mul_f32 v34, s60, v34
    v_mul_f32 v36, s60, v36
    v_mul_f32 v38, s60, v38
    v_exp_f32 v32, v32
    v_exp_f32 v34, v34
    v_exp_f32 v36, v36
    v_exp_f32 v38, v38""")
    for k in range(4): a(f"v_mul_f32 v{44+k}, v32, v{16+k}")
    a("v_mul_f32 v41, v32, v33")
    for w, al in ((1, 34), (2, 36), (3, 38)):
        for k in range(4): a(f"v_fmac_f32 v{44+k}, v{al}, v{16+4*w+k}")
        a(f"v_fmac_f32 v41, v{al}, v{al+1}")
    a(f"""v_cndmask_b32 v44, v44, v40, s[62:63]
    v_cndmask_b32 v45, v45, v41, s[62:63]
    v_cndmask_b32 v46, v46, v42, s[62:63]
    v_cndmask_b32 v47, v47, v42, s[62:63]""")
    tag4([44, 45, 46, 47])
    exec_set(-1, 1)
    fast_store("v[44:47]", "v52", "0")
    a(f"""s_mov_b64 exec, 1
    ds_write_b32 v58, v59 offset:{L_FL+32}
    s_mov_b64 exec, -1""")
    stamp(7)
    a(f"s_cmp_eq_u32 s98, 1\ns_cbranch_scc1 L_end\ns_mov_b32 s60, {WS_SLOW}")
    slow_store("v[44:47]", "v52", "s60", -1, 1)
    a("s_branch L_end")

    a.label("L_roleO")
    a(f"""s_sub_u32 s3, s3, 2
    s_lshr_b32 s96, s5, 2
    s_and_b32 s97, s5, 3
    s_lshl_b32 s98, s4, 19
    s_lshl_b32 s99, s96, 16
    s_add_u32 s98, s98, s99
    s_lshl_b32 s99, s3, 15
    s_add_u32 s98, s98, s99
    s_lshl_b32 s99, s97, 8
    s_add_u32 s98, s98, s99
    s_add_u32 s99, s98, 4096
    v_lshlrev_b32 v8, 13, v2
    v_lshl_add_u32 v8, v3, 4, v8
    s_lshl_b32 s100, s4, 3
    s_add_u32 s100, s100, s96
    s_waitcnt lgkmcnt(0)""")
    a("s_barrier")
    load_epoch()
    if opt.stouch:
        a(f"""s_load_dword s59, s[26:27], 0
        s_add_u32 s60, s16, s98
        s_addc_u32 s61, s17, 0
        s_load_dword s59, s[60:61], 0
        s_lshl_b32 s60, s4, 24
        s_add_u32 s60, s60, {61440*256}
        s_add_u32 s60, s12, s60
        s_addc_u32 s61, s13, 0
        s_load_dword s59, s[60:61], 0
        s_load_dword s59, s[20:21], 0
        s_load_dword s59, s[22:23], 0
        s_load_dword s59, s[24:25], 0
        s_add_u32 s60, s20, 1048576
        s_addc_u32 s61, s21, 0
        s_load_dword s59, s[60:61], 0
        s_add_u32 s60, s22, 1048576
        s_addc_u32 s61, s23, 0
        s_load_dword s59, s[60:61], 0
        s_add_u32 s60, s24, 1048576
        s_addc_u32 s61, s25, 0
        s_load_dword s59, s[60:61], 0
        s_waitcnt lgkmcnt(0)""")
    srd(32, 16, 4194304)
    a(f"""s_lshl_b32 s60, s4, 16
    s_lshr_b32 s61, s96, 1
    s_lshl_b32 s101, s61, 9
    s_add_u32 s60, s60, s101
    s_and_b32 s101, s96, 1
    s_lshl_b32 s101, s101, 8
    s_add_u32 s60, s60, s101
    s_lshl_b32 s101, s3, 7
    s_add_u32 s60, s60, s101
    s_add_u32 s36, s60, {WS_AP}
    s_add_u32 s37, s36, 32768
    v_lshlrev_b32 v9, 11, v3
    v_lshl_add_u32 v9, v2, 5, v9
    s_lshl_b32 s38, s4, 2
    s_add_u32 s38, s38, s61
    s_lshl_b32 s38, s38, 9
    s_add_u32 s38, s38, {WS_ML}
    v_lshlrev_b32 v11, 4, v3
    s_lshl_b32 s39, s100, 11
    s_lshl_b32 s61, s97, 9
    s_add_u32 s39, s39, s61
    s_add_u32 s39, s39, {WS_OP}""")
    slow_if_nofast(["s36", "s37", "s38"])
    a("s_waitcnt lgkmcnt(0)")
    make_tag()
    stamp(1)
    a("s_barrier\ns_barrier\ns_barrier")
    for i in range(8):
        a(f"buffer_load_dwordx4 v[{64+4*i}:{67+4*i}], v8, s[32:35], s{98+(i>>2)} offen offset:{(i&3)*1024} {NT}")
    stamp(2)
    transpose_pairs(64, 96, 0)
    stamp(3)
    lds_wait("L_await_pub", L_FL+32, 4)
    out_addr_setup()
    a("s_mov_b32 s59, 0")
    stamp(4)
    a.label("L_opoll")
    a("""buffer_load_dwordx4 v[32:35], v11, s[40:43], s38 offen sc1
    buffer_load_dwordx4 v[36:39], v11, s[40:43], s38 offen offset:256 sc1
    buffer_load_dwordx4 v[16:19], v9, s[40:43], s36 offen sc1
    buffer_load_dwordx4 v[20:23], v9, s[40:43], s36 offen offset:16 sc1
    buffer_load_dwordx4 v[24:27], v9, s[40:43], s37 offen sc1
    buffer_load_dwordx4 v[28:31], v9, s[40:43], s37 offen offset:16 sc1
    s_waitcnt vmcnt(0)""")
    for i in range(6): check4(12, 16+4*i, 14, first=(i == 0))
    a("v_cmp_ne_u32 vcc, 0, v12")
    poll_tail("L_ook", "L_opoll", ["s36", "s37", "s38"])
    a.label("L_ook")
    stamp(5)
    count_stamp()
    for i in range(6): mask4(16+4*i)
    a("v_max_f32 v44, v32, v36")
    for r in (8, 4, 2, 1): a(f"v_max_f32_dpp v44, v44, v44 row_ror:{r} row_mask:0xf bank_mask:0xf")
    a("""s_mov_b32 s60, 0x3fb8aa3b
    v_sub_f32 v32, v32, v44
    v_sub_f32 v36, v36, v44
    v_mul_f32 v32, s60, v32
    v_mul_f32 v36, s60, v36
    v_exp_f32 v32, v32
    v_exp_f32 v36, v36
    s_nop 0
    v_mul_f32 v45, v32, v33
    v_fmac_f32 v45, v36, v37""")
    for k in range(8): a(f"v_mul_f32 v{16+k}, v32, v{16+k}")
    for k in range(8): a(f"v_fmac_f32 v{16+k}, v36, v{24+k}")
    for r in (8, 4, 2, 1):
        a(f"v_add_f32_dpp v45, v45, v45 row_ror:{r} row_mask:0xf bank_mask:0xf")
        for k in range(8): a(f"v_add_f32_dpp v{16+k}, v{16+k}, v{16+k} row_ror:{r} row_mask:0xf bank_mask:0xf")
    a("v_rcp_f32 v45, v45")
    for k in range(8): a(f"v_mul_f32 v{16+k}, v{16+k}, v45")
    for k in range(4): a(f"v_cvt_pk_bf16_f32 v{24+k}, v{16+2*k}, v{17+2*k}")
    mfma_tile(96, 24, 128)
    a("s_cmp_eq_u32 s3, 0\ns_cbranch_scc1 L_o0")
    row_to_lds(0)
    stamp(6)
    a("s_branch L_end")
    a.label("L_o0")
    row_select()
    a(f"""s_cmp_lt_u32 s4, 4
    s_cselect_b32 s60, 32, 24
    s_cmp_lt_u32 s5, s60
    s_cselect_b32 s98, 1, 0
    v_mov_b32 v10, 0
    v_lshlrev_b32 v20, 4, v0
    s_mov_b32 s59, 0""")
    a.label("L_await_rows")
    a(f"""ds_read_b64 v[22:23], v10 offset:{L_FL+56}
    ds_read_b128 v[24:27], v20 offset:{L_OX}
    ds_read_b128 v[28:31], v20 offset:{L_OX+512}
    s_add_u32 s59, s59, 1
    s_waitcnt lgkmcnt(0)
    v_readfirstlane_b32 s60, v22
    v_readfirstlane_b32 s61, v23
    s_xor_b32 s96, s98, 1
    s_or_b32 s61, s61, s96
    s_and_b32 s60, s60, s61
    s_cmp_gt_u32 s59, {SPIN_MAX*16}
    s_cbranch_scc1 L_rows_x
    s_cmp_eq_u32 s60, 0
    s_cbranch_scc1 L_await_rows""")
    a.label("L_rows_x")
    for k in range(4): a(f"v_add_f32 v{16+k}, v{16+k}, v{24+k}")
    a("s_cmp_eq_u32 s98, 0\ns_cbranch_scc1 L_nodownrow")
    for k in range(4): a(f"v_add_f32 v{16+k}, v{16+k}, v{28+k}")
    a.label("L_nodownrow")
    tag4([16, 17, 18, 19])
    exec_set(-1, 0)
    a("buffer_store_dwordx4 v[16:19], v13, s[40:43], s39 offen sc1")
    a("s_mov_b64 exec, -1")
    stamp(6)
    a("s_cmp_lt_u32 s2, 128\ns_cbranch_scc0 L_end")
    srd(44, 8, 1024)
    a(f"""s_lshl_b32 s60, s4, 4
    s_add_u32 s60, s60, s5
    s_lshl_b32 s61, s60, 3
    v_mov_b32 v13, s61
    buffer_load_dwordx2 v[28:29], v13, s[44:47], 0 offen
    s_lshl_b32 s61, s60, 4
    s_add_u32 s61, s61, {WS_OP}
    v_lshlrev_b32 v12, 11, v0
    s_mov_b32 s59, 0
    buffer_load_dwordx4 v[16:19], v12, s[40:43], s61 offen sc1""")
    a.label("L_fpoll")
    a("buffer_load_dwordx4 v[20:23], v12, s[40:43], s61 offen sc1\ns_waitcnt vmcnt(1)")
    check4(14, 16, 30, first=True)
    a(f"""v_cmp_ne_u32 vcc, 0, v14
    s_add_u32 s59, s59, 1
    s_cbranch_vccz L_fok
    buffer_load_dwordx4 v[16:19], v12, s[40:43], s61 offen sc1
    s_waitcnt vmcnt(1)""")
    check4(14, 20, 30, first=True)
    a(f"""v_cmp_ne_u32 vcc, 0, v14
    s_cbranch_vccz L_fok2
    s_cmp_gt_u32 s59, {SPIN_MAX}
    s_cbranch_scc0 L_fpoll""")
    a.label("L_fok2")
    a("s_waitcnt vmcnt(0)")
    for k in range(4): a(f"v_mov_b32 v{16+k}, v{20+k}")
    a.label("L_fok")
    stamp(7)
    mask4(16)
    for r in (8, 4, 2, 1):
        for k in range(4): a(f"v_add_f32_dpp v{16+k}, v{16+k}, v{16+k} row_ror:{r} row_mask:0xf bank_mask:0xf")
    for k in range(4): a(f"v_add_f32_dpp v{16+k}, v{16+k}, v{16+k} row_bcast:15 row_mask:0xa bank_mask:0xf")
    for k in range(4): a(f"v_add_f32_dpp v{16+k}, v{16+k}, v{16+k} row_bcast:31 row_mask:0xc bank_mask:0xf")
    a("""v_lshlrev_b32 v24, 16, v28
    v_and_b32 v25, 0xffff0000, v28
    v_lshlrev_b32 v26, 16, v29
    v_and_b32 v27, 0xffff0000, v29""")
    for k in range(4): a(f"v_add_f32 v{16+k}, v{16+k}, v{24+k}")
    a("v_cvt_pk_bf16_f32 v16, v16, v17\nv_cvt_pk_bf16_f32 v17, v18, v19")
    srd(44, 26, 1024)
    exec_set(0, "0x80000000")
    a("""buffer_store_dwordx2 v[16:17], v13, s[44:47], 0 offen
    s_cmp_eq_u32 s2, 0
    s_cbranch_scc0 L_noepoch
    v_mov_b32 v18, s7
    v_mov_b32 v19, 0
    buffer_store_dword v18, v19, s[40:43], 0 offen sc1""")
    a.label("L_noepoch")
    a("s_mov_b64 exec, -1")
    stamp(8)
    a.label("L_end")
    if opt.endwait: a("s_waitcnt vmcnt(0)")
    if opt.dbgstamps:
        a("""s_waitcnt lgkmcnt(0)
        s_cmp_eq_u32 s94, 2
        s_cbranch_scc0 L_exit
        s_and_b32 s96, s2, 0xfb
        s_cmp_eq_u32 s96, 0
        s_cbranch_scc0 L_exit
        s_lshl_b32 s96, s2, 3
        s_add_u32 s98, s28, s96
        s_addc_u32 s99, s29, 0
        s_mov_b64 exec, 1
        v_mov_b32 v4, 0""")
        for i in range(8):
            a(f"s_sub_u32 s96, s{64+2*(i+1)}, s64\nv_mov_b32 v2, s96\nglobal_store_dword v4, v2, s[98:99] offset:{4*i}\ns_nop 1")
        a("s_waitcnt vmcnt(0)\ns_branch L_exit")
    if opt.stamps and not opt.dbgstamps:
        a("""s_waitcnt lgkmcnt(0)
        s_lshl_b32 s96, s2, 4
        s_add_u32 s96, s96, s94
        s_lshl_b32 s96, s96, 7
        s_add_u32 s96, s96, 0x4000000
        s_add_u32 s98, s30, s96
        s_addc_u32 s99, s31, 0
        s_mov_b64 exec, 1
        v_mov_b32 v4, 0""")
        for i in range(NSTAMP):
            a(f"v_mov_b32 v2, s{64+2*i}\nv_mov_b32 v3, s{65+2*i}\nglobal_store_dwordx2 v4, v[2:3], s[98:99] offset:{8*i}\ns_nop 1")
        a("v_mov_b32 v2, 0x54414D50\nv_mov_b32 v3, 0x53\nglobal_store_dwordx2 v4, v[2:3], s[98:99] offset:120\ns_waitcnt vmcnt(0)")
    a.label("L_exit")
    a("s_endpgm")
    body = a.finish()
    if opt.stamps:
        init = "  s_mov_b32 s94, s3\n" + "".join(f"  s_mov_b64 s[{64+2*i}:{65+2*i}], 0\n" for i in range(1, NSTAMP))
        body = body.replace("  s_and_b32 s4, s2, 7\n", init + "  s_and_b32 s4, s2, 7\n", 1)
    hdr = f"""; Fused decode step: LayerNorm -> (GQA sliding-window attention + GEGLU FFN) -> residual sum.
; @launch grid=(256,1,1) block=(512,1,1) lds={LDS_BYTES}
.amdgcn_target "amdgcn-amd-amdhsa--gfx950"
.text
.globl {KNAME}
.p2align 8
.type {KNAME},@function
{KNAME}:
"""
    ftr = f""".section .rodata,"a"
.p2align 6
.amdhsa_kernel {KNAME}
  .amdhsa_next_free_vgpr 256
  .amdhsa_next_free_sgpr 102
  .amdhsa_accum_offset 256
  .amdhsa_group_segment_fixed_size 0
  .amdhsa_kernarg_size 96
  .amdhsa_user_sgpr_count 2
  .amdhsa_user_sgpr_kernarg_segment_ptr 1
  .amdhsa_system_sgpr_workgroup_id_x 1
  .amdhsa_float_denorm_mode_32 3
.end_amdhsa_kernel
"""
    return hdr + body + ftr, a.nnop

if __name__ == "__main__":
    import argparse
    ap = argparse.ArgumentParser()
    ap.add_argument("-o", default="out.s")
    ap.add_argument("--stamps", action="store_true")
    ap.add_argument("--nt", default="nt")
    ap.add_argument("--kv", type=int, default=2)
    ap.add_argument("--sleep", type=int, default=1)
    ap.add_argument("--nofast", action="store_true")
    ap.add_argument("--endwait", action="store_true")
    ap.add_argument("--stouch", action="store_true")
    ap.add_argument("--dbgstamps", action="store_true")
    args = ap.parse_args()
    o = Opt(); o.stamps = args.stamps; o.nt = args.nt; o.kv = args.kv; o.sleep = args.sleep; o.forceslow = args.nofast; o.endwait = args.endwait; o.stouch = args.stouch; o.dbgstamps = args.dbgstamps
    if o.dbgstamps: o.stamps = True
    text, nn = build(o)
    open(args.o, "w").write(text)
    print("wrote", args.o, "nops inserted:", nn, "lines:", text.count("\n"))
```

```python
import sys
from asmlib import Asm
KNAME = "parallel_sum__sliding_block_cached__glu_gated_geglu__decode_kernel"

WS_E  = 0
WS_QP = 0x10000
WS_GU = 0x20000
WS_ML = 0x30000
WS_AP = 0x40000
WS_OP = 0x180000
WS_SLOW = 0xC0000
WS_SIZE = 0x20000000
L_XNQ = 0
L_XNF = 1024
L_Q   = 2048
L_AO  = 4096
L_ST  = 12288
L_FL  = 12416
LDS_BYTES = 16384
SPIN_MAX = 1 << 14
NFAST = 48
NSTAMP = 15

class Opt:
    stamps = False
    nt = "nt"
    kv = 2
    sleep = 1
    fast = True
    forceslow = False
    endwait = False
    stouch = False
    dbgstamps = False
    dbgcnt = False

def build(opt):
    a = Asm()
    NT = opt.nt
    def stamp(i):
        if opt.stamps: a(f"s_memrealtime s[{64+2*i}:{65+2*i}]")
    def count_stamp():
        if opt.stamps: a("s_mov_b32 s92, s59\ns_mov_b32 s93, 0")
    def srd(dst, ptr, size):
        a(f"s_mov_b32 s{dst}, s{ptr}\ns_and_b32 s{dst+1}, s{ptr+1}, 0xffff\ns_mov_b32 s{dst+2}, {size}\ns_mov_b32 s{dst+3}, 0x20000")
    def exec_set(lo, hi):
        a(f"s_mov_b32 exec_lo, {lo}\ns_mov_b32 exec_hi, {hi}")
    def make_tag():
        a("""s_add_u32 s7, s6, 1
        s_mul_i32 s6, s7, 0x01010101
        s_xor_b32 s6, s6, 0x5c3a96f0
        s_and_b32 s56, s6, 0xffff
        s_and_b32 s57, s6, 0xffff0000
        v_mov_b32 v254, s6""")
    def tag4(regs):
        for k, r in enumerate(regs):
            a(f"v_perm_b32 v{r}, v{r}, v254, s{50+k}")
    def check4(acc, r, tmp, first=False):
        a(f"v_perm_b32 v{tmp}, v{r+1}, v{r}, s54")
        a(f"v_perm_b32 v{tmp+1}, v{r+3}, v{r+2}, s55")
        if first: a(f"v_xor_b32 v{acc}, s56, v{tmp}")
        else:     a(f"v_bitop3_b32 v{acc}, v{acc}, v{tmp}, s56 bitop3:0xf6")
        a(f"v_bitop3_b32 v{acc}, v{acc}, v{tmp+1}, s57 bitop3:0xf6")
    def fast_store(data, voff, soff):
        a(f"buffer_store_dwordx4 {data}, {voff}, s[40:43], {soff} offen")
    def slow_store(data, voff, soff, lo, hi):
        exec_set(lo, hi)
        a(f"buffer_store_dwordx4 {data}, {voff}, s[40:43], {soff} offen sc1")
        a("s_mov_b64 exec, -1")
    def slow_if_nofast(offs):
        if opt.forceslow:
            for o in offs: a(f"s_add_u32 {o}, {o}, {WS_SLOW}")
    def poll_tail(ok, again, offs, own=None):
        a(f"s_add_u32 s59, s59, 1\ns_cbranch_vccz {ok}")
        if own is not None:
            a(f"s_cmp_eq_u32 s59, {NFAST//2}\ns_cbranch_scc0 {again}_ns")
            slow_store(*own)
            a.label(f"{again}_ns")
        if offs and not opt.forceslow:
            a(f"s_cmp_eq_u32 s59, {NFAST}\ns_cselect_b32 s95, {WS_SLOW}, 0")
            for o in offs: a(f"s_add_u32 {o}, {o}, s95")
        a(f"s_cmp_gt_u32 s59, {SPIN_MAX}\ns_cbranch_scc1 {ok}")
        if opt.sleep: a(f"s_sleep {opt.sleep}")
        a(f"s_branch {again}")
    def lds_wait(label, off, nflags):
        a(f"v_mov_b32 v10, 0\ns_mov_b32 s59, 0")
        a.label(label)
        if nflags == 1:
            a(f"ds_read_b32 v12, v10 offset:{off}\ns_add_u32 s59, s59, 1\ns_waitcnt lgkmcnt(0)")
        else:
            a(f"""ds_read_b128 v[12:15], v10 offset:{off}
            s_add_u32 s59, s59, 1
            s_waitcnt lgkmcnt(0)
            v_and_b32 v12, v12, v13
            v_and_b32 v14, v14, v15
            v_and_b32 v12, v12, v14
            s_nop 0""")
        a(f"""v_readfirstlane_b32 s60, v12
        s_cmp_gt_u32 s59, {SPIN_MAX*16}
        s_cbranch_scc1 {label}_x
        s_cmp_eq_u32 s60, 0
        s_cbranch_scc1 {label}""")
        a.label(label + "_x")
    def mask4(r):
        for k in range(4): a(f"v_and_b32 v{r+k}, s58, v{r+k}")
    def wave_sum_to_sgpr(v, s):
        for r in (8, 4, 2, 1):
            a(f"v_add_f32_dpp v{v}, v{v}, v{v} row_ror:{r} row_mask:0xf bank_mask:0xf")
        a(f"v_add_f32_dpp v{v}, v{v}, v{v} row_bcast:15 row_mask:0xa bank_mask:0xf")
        a(f"v_add_f32_dpp v{v}, v{v}, v{v} row_bcast:31 row_mask:0xc bank_mask:0xf")
        a(f"v_readlane_b32 s{s}, v{v}, 63")
    def gemv_tile(R, A, acc, first, B0=160):
        def perms(e, B):
            w = e >> 1; sel = 49 if (e & 1) else 48
            for u in range(4):
                a(f"v_perm_b32 v{B+u}, v{R+(2*u+1)*4+w}, v{R+(2*u)*4+w}, s{sel}")
        perms(0, B0)
        for e in range(8):
            B = B0 + 4*(e & 1)
            if e < 7: perms(e+1, B0 + 4*((e+1) & 1))
            c = "0" if first else f"v[{acc+4*e}:{acc+4*e+3}]"
            a(f"v_mfma_f32_16x16x32_bf16 v[{acc+4*e}:{acc+4*e+3}], v[{A}:{A+3}], v[{B}:{B+3}], {c}")
    def transpose_pairs(R, D, total_after):
        for u in range(4):
            a(f"s_waitcnt vmcnt({6-2*u+total_after})")
            for e in range(8):
                w = e >> 1; sel = 49 if (e & 1) else 48
                a(f"v_perm_b32 v{D+4*e+u}, v{R+(2*u+1)*4+w}, v{R+(2*u)*4+w}, s{sel}")
    def mfma_tile(D, A, acc):
        for e in range(8):
            a(f"v_mfma_f32_16x16x32_bf16 v[{acc+4*e}:{acc+4*e+3}], v[{A}:{A+3}], v[{D+4*e}:{D+4*e+3}], 0")
    def publish_out():
        for k in range(4): a(f"v_cndmask_b32 v{16+k}, v{128+4*k}, v{128+4*(4+k)}, s[62:63]")
        tag4([16, 17, 18, 19])
        exec_set(-1, 0)
        a("buffer_store_dwordx4 v[16:19], v13, s[40:43], s39 offen sc1")
        a("s_mov_b64 exec, -1")
    def out_addr_setup():
        a("""v_and_b32 v12, 16, v0
        v_cmp_ne_u32 s[62:63], 0, v12
        v_lshlrev_b32 v13, 5, v3
        v_lshl_add_u32 v13, v2, 4, v13""")

    a("s_cmp_ge_u32 s2, 256\ns_cbranch_scc1 L_exit")
    stamp(0)
    a("""s_load_dwordx16 s[8:23], s[0:1], 0
    s_load_dwordx8 s[24:31], s[0:1], 64
    v_lshrrev_b32 v1, 6, v0
    v_and_b32 v0, 63, v0
    v_readfirstlane_b32 s3, v1
    s_and_b32 s4, s2, 7
    s_lshr_b32 s5, s2, 3
    v_lshrrev_b32 v2, 4, v0
    v_and_b32 v3, 15, v0
    s_mov_b32 s48, 0x05040100
    s_mov_b32 s49, 0x07060302
    s_mov_b32 s50, 0x07060500
    s_mov_b32 s51, 0x07060501
    s_mov_b32 s52, 0x07060502
    s_mov_b32 s53, 0x07060503
    s_mov_b32 s54, 0x0c0c0400
    s_mov_b32 s55, 0x04000c0c
    s_mov_b32 s58, 0xffffff00
    s_cmp_eq_u32 s3, 0
    s_cbranch_scc1 L_roleQ
    s_cmp_eq_u32 s3, 1
    s_cbranch_scc1 L_roleF
    s_cmp_lt_u32 s3, 4
    s_cbranch_scc1 L_roleO
    s_branch L_roleA""")

    def load_epoch():
        a("s_load_dword s6, s[30:31], 0")
        srd(40, 30, WS_SIZE)

    def issue_w():
        for tile in range(2):
            for i in range(8):
                r = 64 + (tile*8 + i)*4
                a(f"buffer_load_dwordx4 v[{r}:{r+3}], v50, s[32:35], s36 offen {NT}")
                if tile == 0 and i == 7:
                    a("s_add_u32 s36, s36, s96")
                elif not (tile == 1 and i == 7):
                    a("s_add_u32 s36, s36, s37")
    def x_load():
        srd(44, 8, 1024)
        a("buffer_load_dwordx4 v[4:7], v8, s[44:47], 0 offen")
    def w_voff(stride):
        a(f"""v_and_b32 v50, 56, v0
        v_mul_u32_u24 v50, {stride}, v50
        v_and_b32 v10, 7, v0
        v_lshl_add_u32 v50, v10, 4, v50
        v_lshlrev_b32 v8, 4, v0""")
    def layernorm(lds_xn):
        for k in range(4):
            a(f"v_lshlrev_b32 v{16+2*k}, 16, v{4+k}\nv_and_b32 v{17+2*k}, 0xffff0000, v{4+k}")
        a("""v_add_f32 v24, v16, v17
        v_add_f32 v25, v18, v19
        v_add_f32 v26, v20, v21
        v_add_f32 v27, v22, v23
        v_add_f32 v24, v24, v25
        v_add_f32 v26, v26, v27
        v_add_f32 v24, v24, v26""")
        wave_sum_to_sgpr(24, 60)
        a("v_mov_b32 v25, 0x3b000000\nv_mul_f32 v25, s60, v25")
        for k in range(8): a(f"v_sub_f32 v{32+k}, v{16+k}, v25")
        a("v_mul_f32 v24, v32, v32")
        for k in range(1, 8): a(f"v_fmac_f32 v24, v{32+k}, v{32+k}")
        wave_sum_to_sgpr(24, 61)
        a("""v_mov_b32 v26, 0x3b000000
        v_mul_f32 v26, s61, v26
        v_cvt_pk_bf16_f32 v28, v25, v26
        v_lshlrev_b32 v29, 16, v28
        v_and_b32 v30, 0xffff0000, v28
        v_add_f32 v30, 0x3727c5ac, v30
        v_cvt_pk_bf16_f32 v30, v30, v30
        v_and_b32 v30, 0xffff0000, v30
        v_sqrt_f32 v30, v30
        v_cvt_pk_bf16_f32 v30, v30, v30
        v_and_b32 v30, 0xffff0000, v30
        v_rcp_f32 v30, v30""")
        for k in range(8): a(f"v_sub_f32 v{32+k}, v{16+k}, v29")
        for k in range(4): a(f"v_cvt_pk_bf16_f32 v{40+k}, v{32+2*k}, v{33+2*k}")
        for k in range(4):
            a(f"v_lshlrev_b32 v{32+2*k}, 16, v{40+k}\nv_and_b32 v{33+2*k}, 0xffff0000, v{40+k}")
        for k in range(8): a(f"v_mul_f32 v{32+k}, v{32+k}, v30")
        for k in range(4): a(f"v_cvt_pk_bf16_f32 v{40+k}, v{32+2*k}, v{33+2*k}")
        a(f"ds_write_b128 v8, v[40:43] offset:{lds_xn}")
        a(f"""v_and_b32 v17, 1, v3
        v_lshlrev_b32 v17, 4, v17
        v_lshl_add_u32 v17, v2, 5, v17
        v_add_u32 v17, s38, v17
        ds_read_b128 v[8:11], v17 offset:{lds_xn}
        ds_read_b128 v[12:15], v17 offset:{lds_xn+128}""")
    def slice_epilogue():
        a("v_and_b32 v16, 8, v0\nv_cmp_ne_u32 s[62:63], 0, v16")
        a("""v_and_b32 v17, 7, v0
        v_lshlrev_b32 v17, 5, v17
        v_lshl_add_u32 v17, v16, 1, v17""")
        for k in range(4):
            a(f"v_cndmask_b32 v{20+k}, v{128+4*k}, v{128+4*(4+k)+1}, s[62:63]")
            a(f"v_cndmask_b32 v{24+k}, v{128+4*(4+k)}, v{128+4*k+1}, s[62:63]")
        for k in range(4):
            a(f"v_add_f32_dpp v{200+k}, v{24+k}, v{20+k} row_ror:8 row_mask:0xf bank_mask:0xf")
        a("v_mov_b32 v204, v17")
        tag4([200, 201, 202, 203])
        exec_set("0xffff", 0)
        fast_store("v[200:203]", "v204", "s39")
        a("s_mov_b64 exec, -1")
        a(f"s_add_u32 s38, s39, {WS_SLOW}")

    a.label("L_roleQ")
    a("s_setprio 3")
    a(f"""s_and_b32 s96, s5, 7
    s_lshr_b32 s97, s5, 3
    s_lshl_b32 s36, s97, 20
    s_lshl_b32 s98, s4, 10
    s_add_u32 s36, s36, s98
    s_lshl_b32 s98, s96, 7
    s_add_u32 s36, s36, s98
    s_mov_b32 s37, 8192
    s_lshl_b32 s38, s97, 8
    s_lshl_b32 s39, s4, 13
    s_lshl_b32 s98, s97, 11
    s_add_u32 s39, s39, s98
    s_lshl_b32 s98, s96, 8
    s_add_u32 s39, s39, s98
    s_add_u32 s39, s39, {WS_QP}
    s_mov_b32 s96, {57*8192}""")
    w_voff(8192)
    a("s_waitcnt lgkmcnt(0)")
    x_load()
    srd(32, 14, 4194304)
    issue_w()
    a("s_barrier")
    load_epoch()
    a(f"v_mov_b32 v16, 0\nv_lshlrev_b32 v17, 2, v0")
    exec_set("0xffff", 0)
    a(f"ds_write_b32 v17, v16 offset:{L_FL}\ns_mov_b64 exec, -1")
    stamp(1)
    a("s_waitcnt vmcnt(16) lgkmcnt(0)")
    stamp(2)
    make_tag()
    layernorm(L_XNQ)
    stamp(3)
    a("s_waitcnt vmcnt(8) lgkmcnt(0)")
    gemv_tile(64, 8, 128, True)
    a("s_waitcnt vmcnt(0)")
    gemv_tile(96, 12, 128, False)
    slice_epilogue()
    stamp(4)
    a("s_barrier")
    a(f"""s_lshl_b32 s96, s4, 13
    s_add_u32 s96, s96, {WS_QP}
    s_add_u32 s97, s96, 4096
    v_lshlrev_b32 v8, 4, v0
    s_mov_b32 s59, 0""")
    slow_if_nofast(["s96", "s97"])
    a("s_barrier")
    stamp(5)
    def q_gather():
        for i in range(8):
            so = "s96" if i < 4 else "s97"
            a(f"buffer_load_dwordx4 v[{64+4*i}:{67+4*i}], v8, s[40:43], {so} offen offset:{(i&3)*1024} sc1")
    q_gather()
    a("s_barrier")
    a("s_branch L_qchk")
    a.label("L_qretry")
    q_gather()
    a.label("L_qchk")
    a("s_waitcnt vmcnt(0)")
    for i in range(8): check4(16, 64+4*i, 18, first=(i == 0))
    a("v_cmp_ne_u32 vcc, 0, v16")
    poll_tail("L_qok", "L_qretry", ["s96", "s97"], own=("v[200:203]", "v204", "s38", "0xffff", 0))
    a.label("L_qok")
    stamp(6)
    count_stamp()
    for i in range(8): mask4(64+4*i)
    for half in range(2):
        for k in range(4):
            r0 = 64 + 4*half + k
            a(f"v_add_f32 v{r0}, v{r0}, v{r0+8}\nv_add_f32 v{r0+16}, v{r0+16}, v{r0+24}")
    for half in range(2):
        for k in range(4):
            r0 = 64 + 4*half + k
            a(f"v_add_f32 v{r0}, v{r0}, v{r0+16}")
    for half in range(2):
        a(f"v_cvt_pk_bf16_f32 v{20+2*half}, v{64+4*half}, v{65+4*half}\nv_cvt_pk_bf16_f32 v{21+2*half}, v{66+4*half}, v{67+4*half}")
    a(f"""v_lshlrev_b32 v17, 3, v0
    v_mov_b32 v18, 1
    v_mov_b32 v19, 0
    ds_write_b64 v17, v[20:21] offset:{L_Q}
    ds_write_b64 v17, v[22:23] offset:{L_Q+512}
    ds_write_b32 v19, v18 offset:{L_FL}""")
    slow_store("v[200:203]", "v204", "s38", "0xffff", 0)
    stamp(7)
    a("s_branch L_end")

    a.label("L_roleF")
    a(f"""s_lshl_b32 s96, s4, 2
    s_mul_i32 s97, s4, 3
    s_add_u32 s97, s97, 4
    s_cmp_lt_u32 s4, 4
    s_cselect_b32 s96, s96, s97
    s_cselect_b32 s97, 32, 24
    s_cmp_lt_u32 s5, s97
    s_cselect_b32 s100, 1, 0
    s_lshr_b32 s97, s5, 3
    s_add_u32 s98, s96, s97
    s_lshr_b32 s99, s5, 1
    s_and_b32 s99, s99, 3
    s_mul_i32 s36, s99, {128*3584}
    s_lshl_b32 s98, s98, 7
    s_add_u32 s36, s36, s98
    s_mov_b32 s37, 3584
    s_lshl_b32 s38, s99, 8
    s_lshl_b32 s39, s4, 13
    s_and_b32 s101, s5, 1
    s_lshl_b32 s98, s101, 12
    s_add_u32 s39, s39, s98
    s_lshl_b32 s98, s99, 10
    s_add_u32 s39, s39, s98
    s_lshl_b32 s98, s97, 8
    s_add_u32 s39, s39, s98
    s_add_u32 s39, s39, {WS_GU}
    s_lshl_b32 s96, s96, 16
    s_lshr_b32 s97, s5, 2
    s_lshl_b32 s98, s97, 15
    s_add_u32 s98, s98, s96
    s_and_b32 s97, s5, 3
    s_lshl_b32 s99, s97, 8
    s_add_u32 s98, s98, s99
    s_add_u32 s99, s98, 4096
    s_mov_b32 s96, {57*3584}""")
    w_voff(3584)
    a("s_waitcnt lgkmcnt(0)")
    x_load()
    a("s_barrier")
    load_epoch()
    a("""s_cmp_eq_u32 s101, 0
    s_cselect_b32 s60, s20, s22
    s_cselect_b32 s61, s21, s23""")
    srd(32, 60, 1835008)
    a("s_waitcnt vmcnt(0) lgkmcnt(0)")
    make_tag()
    layernorm(L_XNF)
    srd(44, 24, 1835008)
    a("""v_lshlrev_b32 v51, 13, v2
    v_lshl_add_u32 v51, v3, 4, v51
    s_waitcnt lgkmcnt(0)
    s_setprio 1""")
    stamp(1)
    a("s_barrier\ns_barrier\ns_barrier")
    a("s_cmp_eq_u32 s100, 0\ns_cbranch_scc1 L_end")
    issue_w()
    for i in range(8):
        a(f"buffer_load_dwordx4 v[{168+4*i}:{171+4*i}], v51, s[44:47], s{98+(i>>2)} offen offset:{(i&3)*1024} {NT}")
    stamp(2)
    a(f"""v_lshrrev_b32 v56, 3, v3
    v_lshlrev_b32 v56, 12, v56
    v_and_b32 v57, 3, v3
    v_lshl_add_u32 v56, v57, 10, v56
    v_and_b32 v57, 4, v3
    v_lshl_add_u32 v56, v57, 2, v56
    v_lshl_add_u32 v56, v2, 5, v56
    s_lshl_b32 s98, s4, 13
    s_lshr_b32 s99, s5, 2
    s_lshl_b32 s96, s99, 7
    s_add_u32 s98, s98, s96
    s_add_u32 s98, s98, {WS_GU}""")
    slow_if_nofast(["s98"])
    a("s_waitcnt vmcnt(16)")
    gemv_tile(64, 8, 128, True)
    a("s_waitcnt vmcnt(8)")
    gemv_tile(96, 12, 128, False)
    slice_epilogue()
    stamp(3)
    a(f"""s_lshl_b32 s39, s4, 3
    s_add_u32 s39, s39, s99
    s_add_u32 s39, s39, 128
    s_lshl_b32 s39, s39, 11
    s_lshl_b32 s96, s97, 9
    s_add_u32 s39, s39, s96
    s_add_u32 s39, s39, {WS_OP}
    s_mov_b32 s59, 0""")
    out_addr_setup()
    nst = 1
    transpose_pairs(168, 64, nst)
    stamp(4)
    a.label("L_gpoll")
    a("buffer_load_dwordx4 v[40:43], v56, s[40:43], s98 offen sc1\ns_waitcnt vmcnt(0)")
    check4(12, 40, 14, first=True)
    a("v_cmp_ne_u32 vcc, 0, v12")
    poll_tail("L_gok", "L_gpoll", ["s98"], own=("v[200:203]", "v204", "s38", "0xffff", 0))
    a.label("L_gok")
    stamp(5)
    count_stamp()
    mask4(40)
    for q in ("[1,0,3,2]", "[2,3,0,1]"):
        for k in range(4): a(f"v_add_f32_dpp v{40+k}, v{40+k}, v{40+k} quad_perm:{q} row_mask:0xf bank_mask:0xf")
    a("v_cvt_pk_bf16_f32 v44, v40, v41\nv_cvt_pk_bf16_f32 v45, v42, v43")
    a("v_lshlrev_b32 v40, 16, v44\nv_and_b32 v41, 0xffff0000, v44\nv_lshlrev_b32 v42, 16, v45\nv_and_b32 v43, 0xffff0000, v45")
    a("v_and_b32 v12, 8, v0\nv_cmp_ne_u32 vcc, 0, v12")
    for k in range(4): a(f"v_mov_b32_dpp v{44+k}, v{40+k} row_ror:8 row_mask:0xf bank_mask:0xf")
    for k in range(4):
        a(f"v_cndmask_b32 v{48+k}, v{40+k}, v{44+k}, vcc")
        a(f"v_cndmask_b32 v{52+k}, v{44+k}, v{40+k}, vcc")
    a("s_mov_b32 s60, 0x3d372713\ns_mov_b32 s61, 0xc0135761")
    for k in range(4): a(f"v_mul_f32 v{40+k}, v{48+k}, v{48+k}")
    for k in range(4): a(f"v_fma_f32 v{40+k}, v{40+k}, s60, 1.0")
    for k in range(4): a(f"v_mul_f32 v{40+k}, v{40+k}, v{48+k}")
    for k in range(4): a(f"v_mul_f32 v{40+k}, s61, v{40+k}")
    for k in range(4): a(f"v_exp_f32 v{40+k}, v{40+k}")
    for k in range(4): a(f"v_add_f32 v{40+k}, 1.0, v{40+k}")
    for k in range(4): a(f"v_rcp_f32 v{40+k}, v{40+k}")
    for k in range(4): a(f"v_mul_f32 v{40+k}, v{40+k}, v{48+k}")
    a("v_cvt_pk_bf16_f32 v44, v40, v41\nv_cvt_pk_bf16_f32 v45, v42, v43")
    a("v_lshlrev_b32 v40, 16, v44\nv_and_b32 v41, 0xffff0000, v44\nv_lshlrev_b32 v42, 16, v45\nv_and_b32 v43, 0xffff0000, v45")
    for k in range(4): a(f"v_mul_f32 v{40+k}, v{40+k}, v{52+k}")
    a("v_cvt_pk_bf16_f32 v44, v40, v41\nv_cvt_pk_bf16_f32 v45, v42, v43")
    a("v_and_b32 v12, 4, v0\nv_cmp_ne_u32 vcc, 0, v12")
    a("v_mov_b32_dpp v46, v44 row_ror:4 row_mask:0xf bank_mask:0xf\nv_mov_b32_dpp v47, v45 row_ror:4 row_mask:0xf bank_mask:0xf")
    a("""v_cndmask_b32 v24, v44, v46, vcc
    v_cndmask_b32 v25, v45, v47, vcc
    v_cndmask_b32 v26, v46, v44, vcc
    v_cndmask_b32 v27, v47, v45, vcc""")
    mfma_tile(64, 24, 128)
    publish_out()
    slow_store("v[200:203]", "v204", "s38", "0xffff", 0)
    stamp(6)
    a("s_branch L_end")

    a.label("L_roleA")
    a("s_setprio 2")
    a(f"""s_sub_u32 s3, s3, 4
    s_lshl_b32 s96, s4, 24
    s_lshr_b32 s97, s5, 3
    s_lshl_b32 s97, s97, 18
    s_add_u32 s96, s96, s97
    s_and_b32 s97, s5, 7
    s_lshl_b32 s97, s97, 10
    s_add_u32 s96, s96, s97
    s_lshl_b32 s97, s3, 13
    s_add_u32 s96, s96, s97
    s_add_u32 s96, s96, {61440*256}
    s_add_u32 s97, s96, 131072
    v_and_b32 v8, 3, v3
    v_lshlrev_b32 v8, 15, v8
    v_lshrrev_b32 v9, 2, v3
    v_lshl_add_u32 v8, v9, 8, v8
    v_lshl_add_u32 v8, v2, 4, v8
    v_lshlrev_b32 v9, 8, v2
    v_lshl_add_u32 v9, v3, 4, v9
    s_waitcnt lgkmcnt(0)""")
    srd(32, 10, 134217728)
    srd(36, 12, 134217728)
    a("s_barrier")
    for T in range(2):
        for t in range(4):
            r = 64 + (T*4 + t)*4
            a(f"buffer_load_dwordx4 v[{r}:{r+3}], v8, s[32:35], s{96+T} offen offset:{t*64} {NT}")
    load_epoch()
    stamp(1)
    a("s_barrier")
    for i in range(8):
        r = 96 + i*4
        a(f"buffer_load_dwordx4 v[{r}:{r+3}], v9, s[36:39], s96 offen {NT}")
        if i < 7: a("s_add_u32 s96, s96, 32768")
    a("s_waitcnt lgkmcnt(0)")
    make_tag()
    a(f"""s_lshl_b32 s36, s4, 16
    s_lshl_b32 s37, s5, 11
    s_add_u32 s36, s36, s37
    s_lshl_b32 s37, s3, 9
    s_add_u32 s36, s36, s37
    s_add_u32 s36, s36, {WS_AP}
    v_lshlrev_b32 v52, 4, v0
    v_add_u32 v52, s36, v52
    s_lshl_b32 s36, s4, 2
    s_add_u32 s36, s36, s3
    s_lshl_b32 s36, s36, 9
    s_lshl_b32 s37, s5, 4
    s_add_u32 s36, s36, s37
    s_add_u32 s36, s36, {WS_ML}
    v_mov_b32 v53, s36
    v_cmp_eq_u32 s[62:63], 32, v0
    s_lshl_b32 s36, s3, 11
    v_lshlrev_b32 v54, 9, v2
    v_lshl_add_u32 v54, v3, 5, v54
    v_add_u32 v54, s36, v54
    s_lshl_b32 s36, s3, 3
    v_lshrrev_b32 v55, 2, v3
    v_lshlrev_b32 v55, 5, v55
    v_add_u32 v55, s36, v55
    v_cndmask_b32 v52, v52, v53, s[62:63]
    s_lshl_b32 s36, s3, 9
    v_and_b32 v56, 31, v0
    v_lshlrev_b32 v56, 4, v56
    v_add_u32 v56, s36, v56
    s_lshl_b32 s36, s3, 5
    v_mov_b32 v57, s36
    s_lshl_b32 s36, s3, 2
    v_mov_b32 v58, s36
    v_mov_b32 v59, 1
    v_lshrrev_b32 v60, 2, v3
    v_lshlrev_b32 v60, 8, v60
    v_lshl_add_u32 v60, v2, 4, v60""")
    stamp(2)
    a(f"s_waitcnt vmcnt({8-opt.kv})")
    stamp(3)
    a("s_barrier\ns_barrier")
    transpose_pairs(96, 160, 0)
    lds_wait("L_await_q", L_FL, 1)
    stamp(4)
    for t in range(4):
        a(f"ds_read_b128 v[{16+4*t}:{19+4*t}], v60 offset:{L_Q + t*64}")
    a("s_waitcnt lgkmcnt(0)")
    for t in range(4):
        for T in range(2):
            c = "0" if t == 0 else f"v[{32+4*T}:{35+4*T}]"
            a(f"v_mfma_f32_16x16x32_bf16 v[{32+4*T}:{35+4*T}], v[{64+(T*4+t)*4}:{67+(T*4+t)*4}], v[{16+4*t}:{19+4*t}], {c}")
    a("s_mov_b32 s60, 0x3db504f3")
    for k in range(4): a(f"v_cvt_pk_bf16_f32 v{40+k}, v{32+2*k}, v{33+2*k}")
    for k in range(4): a(f"v_lshlrev_b32 v{32+2*k}, 16, v{40+k}\nv_and_b32 v{33+2*k}, 0xffff0000, v{40+k}")
    for k in range(8): a(f"v_mul_f32 v{32+k}, s60, v{32+k}")
    for k in range(4): a(f"v_cvt_pk_bf16_f32 v{40+k}, v{32+2*k}, v{33+2*k}")
    for k in range(4): a(f"v_lshlrev_b32 v{32+2*k}, 16, v{40+k}\nv_and_b32 v{33+2*k}, 0xffff0000, v{40+k}")
    a("""v_max3_f32 v44, v32, v33, v34
    v_max3_f32 v45, v35, v36, v37
    v_max3_f32 v44, v44, v38, v39
    v_max_f32 v44, v44, v45
    v_mov_b32 v45, v44
    v_permlane16_swap_b32 v44, v45
    v_max_f32 v44, v44, v45
    v_mov_b32 v45, v44
    v_permlane32_swap_b32 v44, v45
    v_max_f32 v44, v44, v45
    s_mov_b32 s60, 0x3fb8aa3b
    v_mul_f32 v46, s60, v44""")
    for k in range(8): a(f"v_fma_f32 v{32+k}, v{32+k}, s60, -v46")
    for k in range(8): a(f"v_exp_f32 v{32+k}, v{32+k}")
    for k in range(4): a(f"v_cvt_pk_bf16_f32 v{40+k}, v{32+2*k}, v{33+2*k}")
    mfma_tile(160, 40, 128)
    a("""v_add_f32 v45, v32, v33
    v_add_f32 v46, v34, v35
    v_add_f32 v47, v36, v37
    v_add_f32 v48, v38, v39
    v_add_f32 v45, v45, v46
    v_add_f32 v47, v47, v48
    v_add_f32 v45, v45, v47
    v_mov_b32 v46, v45
    v_permlane16_swap_b32 v45, v46
    v_add_f32 v45, v45, v46
    v_mov_b32 v46, v45
    v_permlane32_swap_b32 v45, v46
    v_add_f32 v45, v45, v46""")
    stamp(5)
    for e in range(8): a(f"v_mov_b32 v{16+e}, v{128+4*e}")
    a(f"""ds_write_b128 v54, v[16:19] offset:{L_AO}
    ds_write_b128 v54, v[20:23] offset:{L_AO+16}""")
    exec_set("0x1111", 0)
    a(f"""ds_write_b64 v55, v[44:45] offset:{L_ST}
    s_mov_b64 exec, 1
    ds_write_b32 v58, v59 offset:{L_FL+16}
    s_mov_b64 exec, -1""")
    lds_wait("L_await_a", L_FL+16, 4)
    stamp(6)
    for w in range(4): a(f"ds_read_b128 v[{16+4*w}:{19+4*w}], v56 offset:{L_AO + w*2048}")
    a(f"ds_read_b128 v[32:35], v57 offset:{L_ST}\nds_read_b128 v[36:39], v57 offset:{L_ST+16}")
    a("""s_mov_b32 s60, 0x3fb8aa3b
    v_mov_b32 v42, 0
    s_waitcnt lgkmcnt(0)
    v_max3_f32 v40, v32, v34, v36
    v_max_f32 v40, v40, v38
    v_sub_f32 v32, v32, v40
    v_sub_f32 v34, v34, v40
    v_sub_f32 v36, v36, v40
    v_sub_f32 v38, v38, v40
    v_mul_f32 v32, s60, v32
    v_mul_f32 v34, s60, v34
    v_mul_f32 v36, s60, v36
    v_mul_f32 v38, s60, v38
    v_exp_f32 v32, v32
    v_exp_f32 v34, v34
    v_exp_f32 v36, v36
    v_exp_f32 v38, v38""")
    for k in range(4): a(f"v_mul_f32 v{44+k}, v32, v{16+k}")
    a("v_mul_f32 v41, v32, v33")
    for w, al in ((1, 34), (2, 36), (3, 38)):
        for k in range(4): a(f"v_fmac_f32 v{44+k}, v{al}, v{16+4*w+k}")
        a(f"v_fmac_f32 v41, v{al}, v{al+1}")
    a(f"""v_cndmask_b32 v44, v44, v40, s[62:63]
    v_cndmask_b32 v45, v45, v41, s[62:63]
    v_cndmask_b32 v46, v46, v42, s[62:63]
    v_cndmask_b32 v47, v47, v42, s[62:63]""")
    tag4([44, 45, 46, 47])
    exec_set(-1, 1)
    fast_store("v[44:47]", "v52", "0")
    a(f"""s_mov_b64 exec, 1
    ds_write_b32 v58, v59 offset:{L_FL+32}
    s_mov_b64 exec, -1""")
    stamp(7)
    a("v_mov_b32 v10, 0\ns_mov_b32 s59, 0")
    a.label("L_await_o")
    a(f"""ds_read_b64 v[12:13], v10 offset:{L_FL+48}
    s_add_u32 s59, s59, 1
    s_waitcnt lgkmcnt(0)
    v_and_b32 v12, v12, v13
    s_nop 0
    v_readfirstlane_b32 s60, v12
    s_cmp_gt_u32 s59, 96
    s_cbranch_scc1 L_odone
    s_cmp_eq_u32 s60, 0
    s_cbranch_scc0 L_odone
    s_sleep 2
    s_branch L_await_o""")
    a.label("L_odone")
    a(f"s_mov_b32 s60, {WS_SLOW}")
    slow_store("v[44:47]", "v52", "s60", -1, 1)
    a("s_branch L_end")

    a.label("L_roleO")
    a(f"""s_sub_u32 s3, s3, 2
    s_lshr_b32 s96, s5, 2
    s_and_b32 s97, s5, 3
    s_lshl_b32 s98, s4, 19
    s_lshl_b32 s99, s96, 16
    s_add_u32 s98, s98, s99
    s_lshl_b32 s99, s3, 15
    s_add_u32 s98, s98, s99
    s_lshl_b32 s99, s97, 8
    s_add_u32 s98, s98, s99
    s_add_u32 s99, s98, 4096
    v_lshlrev_b32 v8, 13, v2
    v_lshl_add_u32 v8, v3, 4, v8
    s_lshl_b32 s100, s4, 3
    s_add_u32 s100, s100, s96
    s_waitcnt lgkmcnt(0)""")
    a("s_barrier")
    load_epoch()
    if opt.stouch:
        a(f"""s_load_dword s59, s[26:27], 0
        s_add_u32 s60, s16, s98
        s_addc_u32 s61, s17, 0
        s_load_dword s59, s[60:61], 0
        s_lshl_b32 s60, s4, 24
        s_add_u32 s60, s60, {61440*256}
        s_add_u32 s60, s12, s60
        s_addc_u32 s61, s13, 0
        s_load_dword s59, s[60:61], 0
        s_load_dword s59, s[20:21], 0
        s_load_dword s59, s[22:23], 0
        s_load_dword s59, s[24:25], 0
        s_add_u32 s60, s20, 1048576
        s_addc_u32 s61, s21, 0
        s_load_dword s59, s[60:61], 0
        s_add_u32 s60, s22, 1048576
        s_addc_u32 s61, s23, 0
        s_load_dword s59, s[60:61], 0
        s_add_u32 s60, s24, 1048576
        s_addc_u32 s61, s25, 0
        s_load_dword s59, s[60:61], 0
        s_waitcnt lgkmcnt(0)""")
    srd(32, 16, 4194304)
    a(f"""s_lshl_b32 s60, s4, 16
    s_lshr_b32 s61, s96, 1
    s_lshl_b32 s101, s61, 9
    s_add_u32 s60, s60, s101
    s_and_b32 s101, s96, 1
    s_lshl_b32 s101, s101, 8
    s_add_u32 s60, s60, s101
    s_lshl_b32 s101, s3, 7
    s_add_u32 s60, s60, s101
    s_add_u32 s36, s60, {WS_AP}
    s_add_u32 s37, s36, 32768
    v_lshlrev_b32 v9, 11, v3
    v_lshl_add_u32 v9, v2, 5, v9
    s_lshl_b32 s38, s4, 2
    s_add_u32 s38, s38, s61
    s_lshl_b32 s38, s38, 9
    s_add_u32 s38, s38, {WS_ML}
    v_lshlrev_b32 v11, 4, v3
    s_lshl_b32 s39, s100, 1
    s_add_u32 s39, s39, s3
    s_lshl_b32 s39, s39, 11
    s_lshl_b32 s61, s97, 9
    s_add_u32 s39, s39, s61
    s_add_u32 s39, s39, {WS_OP}""")
    slow_if_nofast(["s36", "s37", "s38"])
    a("s_waitcnt lgkmcnt(0)")
    make_tag()
    stamp(1)
    a("s_barrier\ns_barrier\ns_barrier")
    for i in range(8):
        a(f"buffer_load_dwordx4 v[{64+4*i}:{67+4*i}], v8, s[32:35], s{98+(i>>2)} offen offset:{(i&3)*1024} {NT}")
    stamp(2)
    transpose_pairs(64, 96, 0)
    stamp(3)
    lds_wait("L_await_pub", L_FL+32, 4)
    out_addr_setup()
    a("s_mov_b32 s59, 0")
    stamp(4)
    a.label("L_opoll")
    a("""buffer_load_dwordx4 v[32:35], v11, s[40:43], s38 offen sc1
    buffer_load_dwordx4 v[36:39], v11, s[40:43], s38 offen offset:256 sc1
    buffer_load_dwordx4 v[16:19], v9, s[40:43], s36 offen sc1
    buffer_load_dwordx4 v[20:23], v9, s[40:43], s36 offen offset:16 sc1
    buffer_load_dwordx4 v[24:27], v9, s[40:43], s37 offen sc1
    buffer_load_dwordx4 v[28:31], v9, s[40:43], s37 offen offset:16 sc1
    s_waitcnt vmcnt(0)""")
    for i in range(6): check4(12, 16+4*i, 14, first=(i == 0))
    a("v_cmp_ne_u32 vcc, 0, v12")
    poll_tail("L_ook", "L_opoll", ["s36", "s37", "s38"])
    a.label("L_ook")
    a(f"""s_lshl_b32 s60, s3, 2
    v_mov_b32 v46, s60
    v_mov_b32 v47, 1
    ds_write_b32 v46, v47 offset:{L_FL+48}""")
    stamp(5)
    count_stamp()
    for i in range(6): mask4(16+4*i)
    a("v_max_f32 v44, v32, v36")
    for r in (8, 4, 2, 1): a(f"v_max_f32_dpp v44, v44, v44 row_ror:{r} row_mask:0xf bank_mask:0xf")
    a("""s_mov_b32 s60, 0x3fb8aa3b
    v_sub_f32 v32, v32, v44
    v_sub_f32 v36, v36, v44
    v_mul_f32 v32, s60, v32
    v_mul_f32 v36, s60, v36
    v_exp_f32 v32, v32
    v_exp_f32 v36, v36
    s_nop 0
    v_mul_f32 v45, v32, v33
    v_fmac_f32 v45, v36, v37""")
    for k in range(8): a(f"v_mul_f32 v{16+k}, v32, v{16+k}")
    for k in range(8): a(f"v_fmac_f32 v{16+k}, v36, v{24+k}")
    for r in (8, 4, 2, 1):
        a(f"v_add_f32_dpp v45, v45, v45 row_ror:{r} row_mask:0xf bank_mask:0xf")
        for k in range(8): a(f"v_add_f32_dpp v{16+k}, v{16+k}, v{16+k} row_ror:{r} row_mask:0xf bank_mask:0xf")
    a("v_rcp_f32 v45, v45")
    for k in range(8): a(f"v_mul_f32 v{16+k}, v{16+k}, v45")
    for k in range(4): a(f"v_cvt_pk_bf16_f32 v{24+k}, v{16+2*k}, v{17+2*k}")
    mfma_tile(96, 24, 128)
    publish_out()
    stamp(6)
    a("""s_cmp_eq_u32 s3, 0
    s_cbranch_scc0 L_end
    s_cmp_lt_u32 s2, 128
    s_cbranch_scc0 L_end""")
    srd(44, 8, 1024)
    a(f"""s_lshl_b32 s60, s4, 4
    s_add_u32 s60, s60, s5
    s_lshl_b32 s61, s60, 3
    v_mov_b32 v13, s61
    buffer_load_dwordx2 v[28:29], v13, s[44:47], 0 offen
    s_lshl_b32 s61, s60, 4
    s_add_u32 s61, s61, {WS_OP}
    s_add_u32 s98, s61, {64*2048}
    s_add_u32 s99, s61, {128*2048}
    v_lshlrev_b32 v12, 11, v0
    v_and_b32 v15, 7, v0
    v_cmp_gt_u32 vcc, 6, v15
    v_cmp_gt_u32 s[62:63], 32, v0
    s_or_b64 s[62:63], s[62:63], vcc
    v_cndmask_b32 v15, 0, v12, s[62:63]
    s_mov_b32 s59, 0""")
    a.label("L_fpoll")
    a("""buffer_load_dwordx4 v[16:19], v12, s[40:43], s61 offen sc1
    buffer_load_dwordx4 v[20:23], v12, s[40:43], s98 offen sc1
    buffer_load_dwordx4 v[24:27], v15, s[40:43], s99 offen sc1
    s_waitcnt vmcnt(0)""")
    check4(14, 16, 30, first=True)
    check4(14, 20, 30)
    check4(14, 24, 30)
    a("v_cmp_ne_u32 vcc, 0, v14")
    poll_tail("L_fok", "L_fpoll", [])
    a.label("L_fok")
    stamp(7)
    mask4(16); mask4(20); mask4(24)
    for k in range(4): a(f"v_add_f32 v{16+k}, v{16+k}, v{20+k}")
    for k in range(4): a(f"v_cndmask_b32 v{24+k}, 0, v{24+k}, s[62:63]")
    for k in range(4): a(f"v_add_f32 v{16+k}, v{16+k}, v{24+k}")
    for r in (8, 4, 2, 1):
        for k in range(4): a(f"v_add_f32_dpp v{16+k}, v{16+k}, v{16+k} row_ror:{r} row_mask:0xf bank_mask:0xf")
    for k in range(4): a(f"v_add_f32_dpp v{16+k}, v{16+k}, v{16+k} row_bcast:15 row_mask:0xa bank_mask:0xf")
    for k in range(4): a(f"v_add_f32_dpp v{16+k}, v{16+k}, v{16+k} row_bcast:31 row_mask:0xc bank_mask:0xf")
    a("""v_lshlrev_b32 v20, 16, v28
    v_and_b32 v21, 0xffff0000, v28
    v_lshlrev_b32 v22, 16, v29
    v_and_b32 v23, 0xffff0000, v29""")
    for k in range(4): a(f"v_add_f32 v{16+k}, v{16+k}, v{20+k}")
    a("v_cvt_pk_bf16_f32 v16, v16, v17\nv_cvt_pk_bf16_f32 v17, v18, v19")
    srd(44, 26, 1024)
    exec_set(0, "0x80000000")
    a("""buffer_store_dwordx2 v[16:17], v13, s[44:47], 0 offen
    s_cmp_eq_u32 s2, 0
    s_cbranch_scc0 L_noepoch
    v_mov_b32 v18, s7
    v_mov_b32 v19, 0
    buffer_store_dword v18, v19, s[40:43], 0 offen sc1""")
    a.label("L_noepoch")
    a("s_mov_b64 exec, -1")
    stamp(8)
    a.label("L_end")
    if opt.endwait: a("s_waitcnt vmcnt(0)")
    if opt.dbgstamps:
        a("""s_waitcnt lgkmcnt(0)
        s_cmp_eq_u32 s94, 2
        s_cbranch_scc0 L_exit
        s_and_b32 s96, s2, 0xfb
        s_cmp_eq_u32 s96, 0
        s_cbranch_scc0 L_exit
        s_lshl_b32 s96, s2, 3
        s_add_u32 s98, s28, s96
        s_addc_u32 s99, s29, 0
        s_mov_b64 exec, 1
        v_mov_b32 v4, 0""")
        for i in range(8):
            a(f"s_sub_u32 s96, s{64+2*(i+1)}, s64\nv_mov_b32 v2, s96\nglobal_store_dword v4, v2, s[98:99] offset:{4*i}\ns_nop 1")
        a("s_waitcnt vmcnt(0)\ns_branch L_exit")
    if opt.stamps and not opt.dbgstamps:
        a("""s_waitcnt lgkmcnt(0)
        s_lshl_b32 s96, s2, 4
        s_add_u32 s96, s96, s94
        s_lshl_b32 s96, s96, 7
        s_add_u32 s96, s96, 0x4000000
        s_add_u32 s98, s30, s96
        s_addc_u32 s99, s31, 0
        s_mov_b64 exec, 1
        v_mov_b32 v4, 0""")
        for i in range(NSTAMP):
            a(f"v_mov_b32 v2, s{64+2*i}\nv_mov_b32 v3, s{65+2*i}\nglobal_store_dwordx2 v4, v[2:3], s[98:99] offset:{8*i}\ns_nop 1")
        a("v_mov_b32 v2, 0x54414D50\nv_mov_b32 v3, 0x53\nglobal_store_dwordx2 v4, v[2:3], s[98:99] offset:120\ns_waitcnt vmcnt(0)")
    a.label("L_exit")
    a("s_endpgm")
    body = a.finish()
    if opt.stamps:
        init = "  s_mov_b32 s94, s3\n" + "".join(f"  s_mov_b64 s[{64+2*i}:{65+2*i}], 0\n" for i in range(1, NSTAMP))
        body = body.replace("  s_and_b32 s4, s2, 7\n", init + "  s_and_b32 s4, s2, 7\n", 1)
    hdr = f"""; Fused decode step: LayerNorm -> (GQA sliding-window attention + GEGLU FFN) -> residual sum.
; @launch grid=(256,1,1) block=(512,1,1) lds={LDS_BYTES}
.amdgcn_target "amdgcn-amd-amdhsa--gfx950"
.text
.globl {KNAME}
.p2align 8
.type {KNAME},@function
{KNAME}:
"""
    ftr = f""".section .rodata,"a"
.p2align 6
.amdhsa_kernel {KNAME}
  .amdhsa_next_free_vgpr 256
  .amdhsa_next_free_sgpr 102
  .amdhsa_accum_offset 256
  .amdhsa_group_segment_fixed_size 0
  .amdhsa_kernarg_size 96
  .amdhsa_user_sgpr_count 2
  .amdhsa_user_sgpr_kernarg_segment_ptr 1
  .amdhsa_system_sgpr_workgroup_id_x 1
  .amdhsa_float_denorm_mode_32 3
.end_amdhsa_kernel
"""
    return hdr + body + ftr, a.nnop

if __name__ == "__main__":
    import argparse
    ap = argparse.ArgumentParser()
    ap.add_argument("-o", default="out.s")
    ap.add_argument("--stamps", action="store_true")
    ap.add_argument("--nt", default="nt")
    ap.add_argument("--kv", type=int, default=2)
    ap.add_argument("--sleep", type=int, default=1)
    ap.add_argument("--nofast", action="store_true")
    ap.add_argument("--endwait", action="store_true")
    ap.add_argument("--stouch", action="store_true")
    ap.add_argument("--dbgstamps", action="store_true")
    args = ap.parse_args()
    o = Opt(); o.stamps = args.stamps; o.nt = args.nt; o.kv = args.kv; o.sleep = args.sleep; o.forceslow = args.nofast; o.endwait = args.endwait; o.stouch = args.stouch; o.dbgstamps = args.dbgstamps
    if o.dbgstamps: o.stamps = True
    text, nn = build(o)
    open(args.o, "w").write(text)
    print("wrote", args.o, "nops inserted:", nn, "lines:", text.count("\n"))
```

```python
import sys
from asmlib import Asm
KNAME = "parallel_sum__sliding_block_cached__glu_gated_geglu__decode_kernel"

WS_E  = 0
WS_QP = 0x10000
WS_GU = 0x20000
WS_XI = 0x38000
WS_ML = 0x30000
WS_AP = 0x40000
WS_OP = 0x180000
WS_SLOW = 0xC0000
WS_SIZE = 0x20000000
L_XNQ = 0
L_XNF = 1024
L_Q   = 2048
L_AO  = 4096
L_ST  = 12288
L_OX  = 12544
L_FL  = 12416
LDS_BYTES = 16384
SPIN_MAX = 1 << 14
NFAST = 48
NSTAMP = 15

class Opt:
    stamps = False
    nt = "nt"
    kv = 2
    sleep = 1
    fast = True
    forceslow = False
    endwait = False
    ba = True
    fafter = True
    warm = True
    eplain = False
    opflag = 'sc1'
    stouch = False
    dbgstamps = False
    dbgcnt = False

def build(opt):
    a = Asm()
    NT = opt.nt
    def stamp(i):
        if opt.stamps: a(f"s_memrealtime s[{64+2*i}:{65+2*i}]")
    def count_stamp():
        if opt.stamps: a("s_mov_b32 s92, s59\ns_mov_b32 s93, 0")
    def srd(dst, ptr, size):
        a(f"s_mov_b32 s{dst}, s{ptr}\ns_and_b32 s{dst+1}, s{ptr+1}, 0xffff\ns_mov_b32 s{dst+2}, {size}\ns_mov_b32 s{dst+3}, 0x20000")
    def exec_set(lo, hi):
        a(f"s_mov_b32 exec_lo, {lo}\ns_mov_b32 exec_hi, {hi}")
    def make_tag():
        a("""s_add_u32 s7, s6, 1
        s_mul_i32 s6, s7, 0x01010101
        s_xor_b32 s6, s6, 0x5c3a96f0
        s_and_b32 s56, s6, 0xffff
        s_and_b32 s57, s6, 0xffff0000
        v_mov_b32 v254, s6""")
    def tag4(regs):
        for k, r in enumerate(regs):
            a(f"v_perm_b32 v{r}, v{r}, v254, s{50+k}")
    def check4(acc, r, tmp, first=False):
        a(f"v_perm_b32 v{tmp}, v{r+1}, v{r}, s54")
        a(f"v_perm_b32 v{tmp+1}, v{r+3}, v{r+2}, s55")
        if first: a(f"v_xor_b32 v{acc}, s56, v{tmp}")
        else:     a(f"v_bitop3_b32 v{acc}, v{acc}, v{tmp}, s56 bitop3:0xf6")
        a(f"v_bitop3_b32 v{acc}, v{acc}, v{tmp+1}, s57 bitop3:0xf6")
    def fast_store(data, voff, soff):
        a(f"buffer_store_dwordx4 {data}, {voff}, s[40:43], {soff} offen")
    def slow_store(data, voff, soff, lo, hi):
        exec_set(lo, hi)
        a(f"buffer_store_dwordx4 {data}, {voff}, s[40:43], {soff} offen sc1")
        a("s_mov_b64 exec, -1")
    def slow_if_nofast(offs):
        if opt.forceslow:
            for o in offs: a(f"s_add_u32 {o}, {o}, {WS_SLOW}")
    def poll_tail(ok, again, offs, own=None, once=None):
        a(f"s_add_u32 s59, s59, 1\ns_cbranch_vccz {ok}")
        if own is not None:
            a(f"s_cmp_eq_u32 s59, {NFAST//2}\ns_cbranch_scc0 {again}_ns")
            slow_store(*own)
            a.label(f"{again}_ns")
        if offs and not opt.forceslow:
            if once:
                a(f"s_cmp_eq_u32 s59, {NFAST}\ns_cselect_b32 s95, {once}, 0\ns_cselect_b32 {once}, 0, {once}")
            else:
                a(f"s_cmp_eq_u32 s59, {NFAST}\ns_cselect_b32 s95, {WS_SLOW}, 0")
            for o in offs: a(f"s_add_u32 {o}, {o}, s95")
        a(f"s_cmp_gt_u32 s59, {SPIN_MAX}\ns_cbranch_scc1 {ok}")
        if opt.sleep: a(f"s_sleep {opt.sleep}")
        a(f"s_branch {again}")
    def lds_wait(label, off, nflags):
        a(f"v_mov_b32 v10, 0\ns_mov_b32 s59, 0")
        a.label(label)
        if nflags == 1:
            a(f"ds_read_b32 v12, v10 offset:{off}\ns_add_u32 s59, s59, 1\ns_waitcnt lgkmcnt(0)")
        else:
            a(f"""ds_read_b128 v[12:15], v10 offset:{off}
            s_add_u32 s59, s59, 1
            s_waitcnt lgkmcnt(0)
            v_and_b32 v12, v12, v13
            v_and_b32 v14, v14, v15
            v_and_b32 v12, v12, v14
            s_nop 0""")
        a(f"""v_readfirstlane_b32 s60, v12
        s_cmp_gt_u32 s59, {SPIN_MAX*16}
        s_cbranch_scc1 {label}_x
        s_cmp_eq_u32 s60, 0
        s_cbranch_scc1 {label}""")
        a.label(label + "_x")
    def mask4(r):
        for k in range(4): a(f"v_and_b32 v{r+k}, s58, v{r+k}")
    def wave_sum_to_sgpr(v, s):
        for r in (8, 4, 2, 1):
            a(f"v_add_f32_dpp v{v}, v{v}, v{v} row_ror:{r} row_mask:0xf bank_mask:0xf")
        a(f"v_add_f32_dpp v{v}, v{v}, v{v} row_bcast:15 row_mask:0xa bank_mask:0xf")
        a(f"v_add_f32_dpp v{v}, v{v}, v{v} row_bcast:31 row_mask:0xc bank_mask:0xf")
        a(f"v_readlane_b32 s{s}, v{v}, 63")
    def gemv_tile(R, A, acc, first, B0=160):
        def perms(e, B):
            w = e >> 1; sel = 49 if (e & 1) else 48
            for u in range(4):
                a(f"v_perm_b32 v{B+u}, v{R+(2*u+1)*4+w}, v{R+(2*u)*4+w}, s{sel}")
        perms(0, B0)
        for e in range(8):
            B = B0 + 4*(e & 1)
            if e < 7: perms(e+1, B0 + 4*((e+1) & 1))
            c = "0" if first else f"v[{acc+4*e}:{acc+4*e+3}]"
            a(f"v_mfma_f32_16x16x32_bf16 v[{acc+4*e}:{acc+4*e+3}], v[{A}:{A+3}], v[{B}:{B+3}], {c}")
    def transpose_pairs(R, D, total_after):
        for u in range(4):
            a(f"s_waitcnt vmcnt({6-2*u+total_after})")
            for e in range(8):
                w = e >> 1; sel = 49 if (e & 1) else 48
                a(f"v_perm_b32 v{D+4*e+u}, v{R+(2*u+1)*4+w}, v{R+(2*u)*4+w}, s{sel}")
    def mfma_tile(D, A, acc):
        for e in range(8):
            a(f"v_mfma_f32_16x16x32_bf16 v[{acc+4*e}:{acc+4*e+3}], v[{A}:{A+3}], v[{D+4*e}:{D+4*e+3}], 0")
    def publish_out():
        for k in range(4): a(f"v_cndmask_b32 v{16+k}, v{128+4*k}, v{128+4*(4+k)}, s[62:63]")
        tag4([16, 17, 18, 19])
        exec_set(-1, 0)
        a("buffer_store_dwordx4 v[16:19], v13, s[40:43], s39 offen sc1")
        a("s_mov_b64 exec, -1")
    def row_select():
        for k in range(4): a(f"v_cndmask_b32 v{16+k}, v{128+4*k}, v{128+4*(4+k)}, s[62:63]")
    def row_to_lds(slot):
        row_select()
        a(f"""v_lshlrev_b32 v20, 4, v0
        v_mov_b32 v21, 0
        v_mov_b32 v22, 1""")
        exec_set(-1, 0)
        a(f"""ds_write_b128 v20, v[16:19] offset:{L_OX + 512*slot}
        ds_write_b32 v21, v22 offset:{L_FL + 56 + 4*slot}
        s_mov_b64 exec, -1""")
    def out_addr_setup():
        a("""v_and_b32 v12, 16, v0
        v_cmp_ne_u32 s[62:63], 0, v12
        v_lshlrev_b32 v13, 5, v3
        v_lshl_add_u32 v13, v2, 4, v13""")

    a("s_cmp_ge_u32 s2, 256\ns_cbranch_scc1 L_exit")
    stamp(0)
    a("""s_load_dwordx16 s[8:23], s[0:1], 0
    s_load_dwordx8 s[24:31], s[0:1], 64
    v_lshrrev_b32 v1, 6, v0
    v_and_b32 v0, 63, v0
    v_readfirstlane_b32 s3, v1
    s_and_b32 s4, s2, 7
    s_lshr_b32 s5, s2, 3
    v_lshrrev_b32 v2, 4, v0
    v_and_b32 v3, 15, v0
    s_mov_b32 s48, 0x05040100
    s_mov_b32 s49, 0x07060302
    s_mov_b32 s50, 0x07060500
    s_mov_b32 s51, 0x07060501
    s_mov_b32 s52, 0x07060502
    s_mov_b32 s53, 0x07060503
    s_mov_b32 s54, 0x0c0c0400
    s_mov_b32 s55, 0x04000c0c
    s_mov_b32 s58, 0xffffff00
    s_cmp_eq_u32 s3, 0
    s_cbranch_scc1 L_roleQ
    s_cmp_eq_u32 s3, 1
    s_cbranch_scc1 L_roleF
    s_cmp_lt_u32 s3, 4
    s_cbranch_scc1 L_roleO
    s_branch L_roleA""")

    def load_epoch():
        a("s_load_dword s6, s[30:31], 0")
        srd(40, 30, WS_SIZE)

    def issue_w():
        for tile in range(2):
            for i in range(8):
                r = 64 + (tile*8 + i)*4
                a(f"buffer_load_dwordx4 v[{r}:{r+3}], v50, s[32:35], s36 offen {NT}")
                if tile == 0 and i == 7:
                    a("s_add_u32 s36, s36, s96")
                elif not (tile == 1 and i == 7):
                    a("s_add_u32 s36, s36, s37")
    def x_load():
        srd(44, 8, 1024)
        a("buffer_load_dwordx4 v[4:7], v8, s[44:47], 0 offen")
    def w_voff(stride):
        a(f"""v_and_b32 v50, 56, v0
        v_mul_u32_u24 v50, {stride}, v50
        v_and_b32 v10, 7, v0
        v_lshl_add_u32 v50, v10, 4, v50
        v_lshlrev_b32 v8, 4, v0""")
    def layernorm(lds_xn):
        for k in range(4):
            a(f"v_lshlrev_b32 v{16+2*k}, 16, v{4+k}\nv_and_b32 v{17+2*k}, 0xffff0000, v{4+k}")
        a("""v_add_f32 v24, v16, v17
        v_add_f32 v25, v18, v19
        v_add_f32 v26, v20, v21
        v_add_f32 v27, v22, v23
        v_add_f32 v24, v24, v25
        v_add_f32 v26, v26, v27
        v_add_f32 v24, v24, v26""")
        wave_sum_to_sgpr(24, 60)
        a("v_mov_b32 v25, 0x3b000000\nv_mul_f32 v25, s60, v25")
        for k in range(8): a(f"v_sub_f32 v{32+k}, v{16+k}, v25")
        a("v_mul_f32 v24, v32, v32")
        for k in range(1, 8): a(f"v_fmac_f32 v24, v{32+k}, v{32+k}")
        wave_sum_to_sgpr(24, 61)
        a("""v_mov_b32 v26, 0x3b000000
        v_mul_f32 v26, s61, v26
        v_cvt_pk_bf16_f32 v28, v25, v26
        v_lshlrev_b32 v29, 16, v28
        v_and_b32 v30, 0xffff0000, v28
        v_add_f32 v30, 0x3727c5ac, v30
        v_cvt_pk_bf16_f32 v30, v30, v30
        v_and_b32 v30, 0xffff0000, v30
        v_sqrt_f32 v30, v30
        v_cvt_pk_bf16_f32 v30, v30, v30
        v_and_b32 v30, 0xffff0000, v30
        v_rcp_f32 v30, v30""")
        for k in range(8): a(f"v_sub_f32 v{32+k}, v{16+k}, v29")
        for k in range(4): a(f"v_cvt_pk_bf16_f32 v{40+k}, v{32+2*k}, v{33+2*k}")
        for k in range(4):
            a(f"v_lshlrev_b32 v{32+2*k}, 16, v{40+k}\nv_and_b32 v{33+2*k}, 0xffff0000, v{40+k}")
        for k in range(8): a(f"v_mul_f32 v{32+k}, v{32+k}, v30")
        for k in range(4): a(f"v_cvt_pk_bf16_f32 v{40+k}, v{32+2*k}, v{33+2*k}")
        a(f"ds_write_b128 v8, v[40:43] offset:{lds_xn}")
        a(f"""v_and_b32 v17, 1, v3
        v_lshlrev_b32 v17, 4, v17
        v_lshl_add_u32 v17, v2, 5, v17
        v_add_u32 v17, s38, v17
        ds_read_b128 v[8:11], v17 offset:{lds_xn}
        ds_read_b128 v[12:15], v17 offset:{lds_xn+128}""")
    def slice_store_addr(xi=False):
        a("""v_and_b32 v16, 8, v0
        v_and_b32 v204, 7, v0
        v_lshlrev_b32 v204, 5, v204
        v_lshl_add_u32 v204, v16, 1, v204""")
        if xi:
            a(f"""s_lshl_b32 s60, s4, 9
            s_lshl_b32 s61, s5, 4
            s_add_u32 s60, s60, s61
            s_add_u32 s60, s60, {WS_XI}
            s_sub_u32 s60, s60, s39
            v_cmp_eq_u32 vcc, 16, v0
            v_mov_b32 v18, s60
            s_nop 0
            v_cndmask_b32 v204, v204, v18, vcc""")
    def pretouch(dst, voff, soff, lo, hi):
        exec_set(lo, hi)
        a(f"buffer_load_dwordx4 {dst}, {voff}, s[40:43], {soff} offen sc1")
        a("s_mov_b64 exec, -1")
    def slice_epilogue(xi=False):
        a("v_and_b32 v16, 8, v0\nv_cmp_ne_u32 s[62:63], 0, v16")
        for k in range(4):
            a(f"v_cndmask_b32 v{20+k}, v{128+4*k}, v{128+4*(4+k)+1}, s[62:63]")
            a(f"v_cndmask_b32 v{24+k}, v{128+4*(4+k)}, v{128+4*k+1}, s[62:63]")
        for k in range(4):
            a(f"v_add_f32_dpp v{200+k}, v{24+k}, v{20+k} row_ror:8 row_mask:0xf bank_mask:0xf")
        if xi:
            a(f"""s_getreg_b32 s60, hwreg(HW_REG_XCC_ID)
            s_and_b32 s60, s60, 0xffff
            s_lshl_b32 s37, s60, 8
            v_cmp_eq_u32 vcc, 16, v0
            v_mov_b32 v16, s37""")
            for k in range(4): a(f"v_cndmask_b32 v{200+k}, v{200+k}, v16, vcc")
        tag4([200, 201, 202, 203])
        exec_set("0x1ffff" if xi else "0xffff", 0)
        fast_store("v[200:203]", "v204", "s39")
        a("s_mov_b64 exec, -1")
        a(f"s_add_u32 s38, s39, {WS_SLOW}")

    a.label("L_roleQ")
    a("s_setprio 3")
    a(f"""s_and_b32 s96, s5, 7
    s_lshr_b32 s97, s5, 3
    s_lshl_b32 s36, s97, 20
    s_lshl_b32 s98, s4, 10
    s_add_u32 s36, s36, s98
    s_lshl_b32 s98, s96, 7
    s_add_u32 s36, s36, s98
    s_mov_b32 s37, 8192
    s_lshl_b32 s38, s97, 8
    s_lshl_b32 s39, s4, 13
    s_lshl_b32 s98, s97, 11
    s_add_u32 s39, s39, s98
    s_lshl_b32 s98, s96, 8
    s_add_u32 s39, s39, s98
    s_add_u32 s39, s39, {WS_QP}
    s_mov_b32 s96, {57*8192}""")
    w_voff(8192)
    a("s_waitcnt lgkmcnt(0)")
    x_load()
    srd(32, 14, 4194304)
    issue_w()
    if opt.ba: a("s_barrier")
    load_epoch()
    slice_store_addr(xi=True)
    if opt.warm: pretouch("v[208:211]", "v204", "s39", "0x1ffff", 0)
    a(f"v_mov_b32 v16, 0\nv_lshlrev_b32 v17, 2, v0")
    exec_set("0xffff", 0)
    a(f"ds_write_b32 v17, v16 offset:{L_FL}\ns_mov_b64 exec, -1")
    stamp(1)
    xw = 1 if opt.warm else 0
    a(f"s_waitcnt vmcnt({16+xw}) lgkmcnt(0)")
    stamp(2)
    make_tag()
    layernorm(L_XNQ)
    stamp(3)
    a(f"s_waitcnt vmcnt({8+xw}) lgkmcnt(0)")
    gemv_tile(64, 8, 128, True)
    a(f"s_waitcnt vmcnt({xw})")
    gemv_tile(96, 12, 128, False)
    slice_epilogue(xi=True)
    stamp(4)
    a("s_barrier")
    if opt.fafter: a("s_barrier")
    a(f"""s_lshl_b32 s96, s4, 13
    s_add_u32 s96, s96, {WS_QP}
    s_add_u32 s97, s96, 4096
    s_lshl_b32 s98, s4, 9
    s_add_u32 s98, s98, {WS_XI}
    v_lshlrev_b32 v8, 4, v0
    v_and_b32 v9, 31, v0
    v_lshlrev_b32 v9, 4, v9
    s_mov_b32 s59, 0""")
    slow_if_nofast(["s96", "s97", "s98"])
    a("s_barrier")
    stamp(5)
    def q_gather():
        for i in range(8):
            so = "s96" if i < 4 else "s97"
            a(f"buffer_load_dwordx4 v[{64+4*i}:{67+4*i}], v8, s[40:43], {so} offen offset:{(i&3)*1024} sc1")
        a("buffer_load_dwordx4 v[96:99], v9, s[40:43], s98 offen sc1")
    q_gather()
    a("s_barrier")
    a("s_branch L_qchk")
    a.label("L_qretry")
    q_gather()
    a.label("L_qchk")
    a("s_waitcnt vmcnt(0)")
    for i in range(9): check4(16, 64+4*i, 18, first=(i == 0))
    a("v_cmp_ne_u32 vcc, 0, v16")
    poll_tail("L_qok", "L_qretry", ["s96", "s97", "s98"], own=("v[200:203]", "v204", "s38", "0x1ffff", 0))
    a.label("L_qok")
    stamp(6)
    count_stamp()
    for i in range(8): mask4(64+4*i)
    a("""v_and_b32 v96, s58, v96
    v_cmp_ne_u32 vcc, s37, v96""")
    for half in range(2):
        for k in range(4):
            r0 = 64 + 4*half + k
            a(f"v_add_f32 v{r0}, v{r0}, v{r0+8}\nv_add_f32 v{r0+16}, v{r0+16}, v{r0+24}")
    a(f"""s_cmp_lg_u64 vcc, 0
    s_cselect_b32 s60, 3, 1
    s_cmp_ge_u32 s59, {NFAST//2}
    s_cselect_b32 s60, 3, s60""")
    for half in range(2):
        for k in range(4):
            r0 = 64 + 4*half + k
            a(f"v_add_f32 v{r0}, v{r0}, v{r0+16}")
    for half in range(2):
        a(f"v_cvt_pk_bf16_f32 v{20+2*half}, v{64+4*half}, v{65+4*half}\nv_cvt_pk_bf16_f32 v{21+2*half}, v{66+4*half}, v{67+4*half}")
    a(f"""v_lshlrev_b32 v17, 3, v0
    v_mov_b32 v18, s60
    v_mov_b32 v19, 0
    ds_write_b64 v17, v[20:21] offset:{L_Q}
    ds_write_b64 v17, v[22:23] offset:{L_Q+512}
    ds_write_b32 v19, v18 offset:{L_FL}
    s_cmp_eq_u32 s60, 1
    s_cbranch_scc1 L_qend""")
    slow_store("v[200:203]", "v204", "s38", "0x1ffff", 0)
    a.label("L_qend")
    stamp(7)
    a("s_branch L_end")

    a.label("L_roleF")
    a(f"""s_lshl_b32 s96, s4, 2
    s_mul_i32 s97, s4, 3
    s_add_u32 s97, s97, 4
    s_cmp_lt_u32 s4, 4
    s_cselect_b32 s96, s96, s97
    s_cselect_b32 s97, 32, 24
    s_cmp_lt_u32 s5, s97
    s_cselect_b32 s100, 1, 0
    s_lshr_b32 s97, s5, 3
    s_add_u32 s98, s96, s97
    s_lshr_b32 s99, s5, 1
    s_and_b32 s99, s99, 3
    s_mul_i32 s36, s99, {128*3584}
    s_lshl_b32 s98, s98, 7
    s_add_u32 s36, s36, s98
    s_mov_b32 s37, 3584
    s_lshl_b32 s38, s99, 8
    s_lshl_b32 s39, s4, 13
    s_and_b32 s101, s5, 1
    s_lshl_b32 s98, s101, 12
    s_add_u32 s39, s39, s98
    s_lshl_b32 s98, s99, 10
    s_add_u32 s39, s39, s98
    s_lshl_b32 s98, s97, 8
    s_add_u32 s39, s39, s98
    s_add_u32 s39, s39, {WS_GU}
    s_lshl_b32 s96, s96, 16
    s_lshr_b32 s97, s5, 2
    s_lshl_b32 s98, s97, 15
    s_add_u32 s98, s98, s96
    s_and_b32 s97, s5, 3
    s_lshl_b32 s99, s97, 8
    s_add_u32 s98, s98, s99
    s_add_u32 s99, s98, 4096
    s_mov_b32 s96, {57*3584}""")
    w_voff(3584)
    a("s_setprio 2")
    a("s_waitcnt lgkmcnt(0)")
    x_load()
    a("""s_cmp_eq_u32 s101, 0
    s_cselect_b32 s60, s20, s22
    s_cselect_b32 s61, s21, s23""")
    srd(32, 60, 1835008)
    if opt.ba: a("s_barrier")
    a("s_cmp_eq_u32 s100, 0\ns_cbranch_scc1 L_fskip")
    if opt.fafter:
        load_epoch()
        slice_store_addr()
        a("s_setprio 3")
        a("s_barrier")
        issue_w()
        a("s_barrier")
        if opt.warm: pretouch("v[208:211]", "v204", "s39", "0xffff", 0)
        a(f"s_waitcnt vmcnt({16+xw}) lgkmcnt(0)")
    else:
        issue_w()
        load_epoch()
        slice_store_addr()
        if opt.warm: pretouch("v[208:211]", "v204", "s39", "0xffff", 0)
        a("s_barrier")
        a(f"s_waitcnt vmcnt({16+xw}) lgkmcnt(0)")
    make_tag()
    layernorm(L_XNF)
    srd(44, 24, 1835008)
    a("""v_lshlrev_b32 v51, 13, v2
    v_lshl_add_u32 v51, v3, 4, v51""")
    stamp(1)
    a(f"s_waitcnt vmcnt({8+xw}) lgkmcnt(0)")
    gemv_tile(64, 8, 128, True)
    a(f"s_waitcnt vmcnt({xw})")
    gemv_tile(96, 12, 128, False)
    slice_epilogue()
    stamp(2)
    a("s_setprio 0")
    a("s_barrier\ns_barrier")
    for i in range(8):
        a(f"buffer_load_dwordx4 v[{168+4*i}:{171+4*i}], v51, s[44:47], s{98+(i>>2)} offen offset:{(i&3)*1024} {NT}")
    stamp(3)
    a(f"""v_lshrrev_b32 v56, 3, v3
    v_lshlrev_b32 v56, 12, v56
    v_and_b32 v57, 3, v3
    v_lshl_add_u32 v56, v57, 10, v56
    v_and_b32 v57, 4, v3
    v_lshl_add_u32 v56, v57, 2, v56
    v_lshl_add_u32 v56, v2, 5, v56
    s_lshl_b32 s98, s4, 13
    s_lshr_b32 s99, s5, 2
    s_lshl_b32 s96, s99, 7
    s_add_u32 s98, s98, s96
    s_add_u32 s98, s98, {WS_GU}
    s_mov_b32 s59, 0""")
    slow_if_nofast(["s98"])
    out_addr_setup()
    for u in range(4):
        a(f"s_waitcnt vmcnt({6-2*u + (1 if u else 0)})")
        for e in range(8):
            w = e >> 1; sel = 49 if (e & 1) else 48
            a(f"v_perm_b32 v{64+4*e+u}, v{168+(2*u+1)*4+w}, v{168+(2*u)*4+w}, s{sel}")
        if u == 0: a("buffer_load_dwordx4 v[32:35], v56, s[40:43], s98 offen sc1")
    stamp(4)
    a.label("L_gpoll")
    a("buffer_load_dwordx4 v[36:39], v56, s[40:43], s98 offen sc1\ns_waitcnt vmcnt(1)")
    check4(12, 32, 14, first=True)
    a("v_cmp_ne_u32 vcc, 0, v12\ns_cbranch_vccz L_gokA")
    a("buffer_load_dwordx4 v[32:35], v56, s[40:43], s98 offen sc1\ns_waitcnt vmcnt(1)")
    check4(12, 36, 14, first=True)
    a("v_cmp_ne_u32 vcc, 0, v12")
    poll_tail("L_gokB", "L_gpoll", ["s98"], own=("v[200:203]", "v204", "s38", "0xffff", 0))
    a.label("L_gokB")
    for k in range(4): a(f"v_and_b32 v{40+k}, s58, v{36+k}")
    a("s_branch L_gok")
    a.label("L_gokA")
    for k in range(4): a(f"v_and_b32 v{40+k}, s58, v{32+k}")
    a.label("L_gok")
    stamp(5)
    count_stamp()
    for q in ("[1,0,3,2]", "[2,3,0,1]"):
        for k in range(4): a(f"v_add_f32_dpp v{40+k}, v{40+k}, v{40+k} quad_perm:{q} row_mask:0xf bank_mask:0xf")
    a("v_cvt_pk_bf16_f32 v44, v40, v41\nv_cvt_pk_bf16_f32 v45, v42, v43")
    a("v_lshlrev_b32 v40, 16, v44\nv_and_b32 v41, 0xffff0000, v44\nv_lshlrev_b32 v42, 16, v45\nv_and_b32 v43, 0xffff0000, v45")
    a("v_and_b32 v12, 8, v0\nv_cmp_ne_u32 vcc, 0, v12")
    for k in range(4): a(f"v_mov_b32_dpp v{44+k}, v{40+k} row_ror:8 row_mask:0xf bank_mask:0xf")
    for k in range(4):
        a(f"v_cndmask_b32 v{48+k}, v{40+k}, v{44+k}, vcc")
        a(f"v_cndmask_b32 v{52+k}, v{44+k}, v{40+k}, vcc")
    a("s_mov_b32 s60, 0x3d372713\ns_mov_b32 s61, 0xc0135761")
    for k in range(4): a(f"v_mul_f32 v{40+k}, v{48+k}, v{48+k}")
    for k in range(4): a(f"v_fma_f32 v{40+k}, v{40+k}, s60, 1.0")
    for k in range(4): a(f"v_mul_f32 v{40+k}, v{40+k}, v{48+k}")
    for k in range(4): a(f"v_mul_f32 v{40+k}, s61, v{40+k}")
    for k in range(4): a(f"v_exp_f32 v{40+k}, v{40+k}")
    for k in range(4): a(f"v_add_f32 v{40+k}, 1.0, v{40+k}")
    for k in range(4): a(f"v_rcp_f32 v{40+k}, v{40+k}")
    for k in range(4): a(f"v_mul_f32 v{40+k}, v{40+k}, v{48+k}")
    a("v_cvt_pk_bf16_f32 v44, v40, v41\nv_cvt_pk_bf16_f32 v45, v42, v43")
    a("v_lshlrev_b32 v40, 16, v44\nv_and_b32 v41, 0xffff0000, v44\nv_lshlrev_b32 v42, 16, v45\nv_and_b32 v43, 0xffff0000, v45")
    for k in range(4): a(f"v_mul_f32 v{40+k}, v{40+k}, v{52+k}")
    a("v_cvt_pk_bf16_f32 v44, v40, v41\nv_cvt_pk_bf16_f32 v45, v42, v43")
    a("v_and_b32 v12, 4, v0\nv_cmp_ne_u32 vcc, 0, v12")
    a("v_mov_b32_dpp v46, v44 row_ror:4 row_mask:0xf bank_mask:0xf\nv_mov_b32_dpp v47, v45 row_ror:4 row_mask:0xf bank_mask:0xf")
    a("""v_cndmask_b32 v24, v44, v46, vcc
    v_cndmask_b32 v25, v45, v47, vcc
    v_cndmask_b32 v26, v46, v44, vcc
    v_cndmask_b32 v27, v47, v45, vcc""")
    mfma_tile(64, 24, 128)
    row_to_lds(1)
    stamp(6)
    a(f"v_mov_b32 v10, 0\nds_read_b32 v12, v10 offset:{L_FL}\ns_waitcnt lgkmcnt(0)\nv_readfirstlane_b32 s60, v12\ns_cmp_eq_u32 s60, 1\ns_cbranch_scc1 L_end")
    slow_store("v[200:203]", "v204", "s38", "0xffff", 0)
    a("s_branch L_end")
    a.label("L_fskip")
    if opt.fafter: a("s_barrier")
    a("s_barrier\ns_barrier\ns_barrier\ns_branch L_end")

    a.label("L_roleA")
    a("s_setprio 2")
    a(f"""s_sub_u32 s3, s3, 4
    s_lshl_b32 s96, s4, 24
    s_lshr_b32 s97, s5, 3
    s_lshl_b32 s97, s97, 18
    s_add_u32 s96, s96, s97
    s_and_b32 s97, s5, 7
    s_lshl_b32 s97, s97, 10
    s_add_u32 s96, s96, s97
    s_lshl_b32 s97, s3, 13
    s_add_u32 s96, s96, s97
    s_add_u32 s96, s96, {61440*256}
    s_add_u32 s97, s96, 131072
    v_and_b32 v8, 3, v3
    v_lshlrev_b32 v8, 15, v8
    v_lshrrev_b32 v9, 2, v3
    v_lshl_add_u32 v8, v9, 8, v8
    v_lshl_add_u32 v8, v2, 4, v8
    v_lshlrev_b32 v9, 8, v2
    v_lshl_add_u32 v9, v3, 4, v9
    s_waitcnt lgkmcnt(0)""")
    srd(32, 10, 134217728)
    srd(36, 12, 134217728)
    if opt.ba: a("s_barrier")
    for T in range(2):
        for t in range(4):
            r = 64 + (T*4 + t)*4
            a(f"buffer_load_dwordx4 v[{r}:{r+3}], v8, s[32:35], s{96+T} offen offset:{t*64} {NT}")
    load_epoch()
    stamp(1)
    a("s_barrier")
    if opt.fafter: a("s_barrier")
    for i in range(8):
        r = 96 + i*4
        a(f"buffer_load_dwordx4 v[{r}:{r+3}], v9, s[36:39], s96 offen {NT}")
        if i < 7: a("s_add_u32 s96, s96, 32768")
    a("s_waitcnt lgkmcnt(0)")
    make_tag()
    a(f"""s_lshl_b32 s36, s4, 16
    s_lshl_b32 s37, s5, 11
    s_add_u32 s36, s36, s37
    s_lshl_b32 s37, s3, 9
    s_add_u32 s36, s36, s37
    s_add_u32 s36, s36, {WS_AP}
    v_lshlrev_b32 v52, 4, v0
    v_add_u32 v52, s36, v52
    s_lshl_b32 s36, s4, 2
    s_add_u32 s36, s36, s3
    s_lshl_b32 s36, s36, 9
    s_lshl_b32 s37, s5, 4
    s_add_u32 s36, s36, s37
    s_add_u32 s36, s36, {WS_ML}
    v_mov_b32 v53, s36
    v_cmp_eq_u32 s[62:63], 32, v0
    s_lshl_b32 s36, s3, 11
    v_lshlrev_b32 v54, 9, v2
    v_lshl_add_u32 v54, v3, 5, v54
    v_add_u32 v54, s36, v54
    s_lshl_b32 s36, s3, 3
    v_lshrrev_b32 v55, 2, v3
    v_lshlrev_b32 v55, 5, v55
    v_add_u32 v55, s36, v55
    v_cndmask_b32 v52, v52, v53, s[62:63]
    s_lshl_b32 s36, s3, 9
    v_and_b32 v56, 31, v0
    v_lshlrev_b32 v56, 4, v56
    v_add_u32 v56, s36, v56
    s_lshl_b32 s36, s3, 5
    v_mov_b32 v57, s36
    s_lshl_b32 s36, s3, 2
    v_mov_b32 v58, s36
    v_mov_b32 v59, 1
    v_lshrrev_b32 v60, 2, v3
    v_lshlrev_b32 v60, 8, v60
    v_lshl_add_u32 v60, v2, 4, v60""")
    stamp(2)
    a(f"s_waitcnt vmcnt({8-opt.kv})")
    stamp(3)
    a("s_barrier\ns_barrier")
    if opt.warm: pretouch("v[200:203]", "v52", "0", -1, 1)
    transpose_pairs(96, 160, 1 if opt.warm else 0)
    lds_wait("L_await_q", L_FL, 1)
    a("s_mov_b32 s98, s60")
    stamp(4)
    for t in range(4):
        a(f"ds_read_b128 v[{16+4*t}:{19+4*t}], v60 offset:{L_Q + t*64}")
    a("s_waitcnt lgkmcnt(0)")
    for t in range(4):
        for T in range(2):
            c = "0" if t == 0 else f"v[{32+4*T}:{35+4*T}]"
            a(f"v_mfma_f32_16x16x32_bf16 v[{32+4*T}:{35+4*T}], v[{64+(T*4+t)*4}:{67+(T*4+t)*4}], v[{16+4*t}:{19+4*t}], {c}")
    a("s_mov_b32 s60, 0x3db504f3")
    for k in range(4): a(f"v_cvt_pk_bf16_f32 v{40+k}, v{32+2*k}, v{33+2*k}")
    for k in range(4): a(f"v_lshlrev_b32 v{32+2*k}, 16, v{40+k}\nv_and_b32 v{33+2*k}, 0xffff0000, v{40+k}")
    for k in range(8): a(f"v_mul_f32 v{32+k}, s60, v{32+k}")
    for k in range(4): a(f"v_cvt_pk_bf16_f32 v{40+k}, v{32+2*k}, v{33+2*k}")
    for k in range(4): a(f"v_lshlrev_b32 v{32+2*k}, 16, v{40+k}\nv_and_b32 v{33+2*k}, 0xffff0000, v{40+k}")
    a("""v_max3_f32 v44, v32, v33, v34
    v_max3_f32 v45, v35, v36, v37
    v_max3_f32 v44, v44, v38, v39
    v_max_f32 v44, v44, v45
    v_mov_b32 v45, v44
    v_permlane16_swap_b32 v44, v45
    v_max_f32 v44, v44, v45
    v_mov_b32 v45, v44
    v_permlane32_swap_b32 v44, v45
    v_max_f32 v44, v44, v45
    s_mov_b32 s60, 0x3fb8aa3b
    v_mul_f32 v46, s60, v44""")
    for k in range(8): a(f"v_fma_f32 v{32+k}, v{32+k}, s60, -v46")
    for k in range(8): a(f"v_exp_f32 v{32+k}, v{32+k}")
    for k in range(4): a(f"v_cvt_pk_bf16_f32 v{40+k}, v{32+2*k}, v{33+2*k}")
    mfma_tile(160, 40, 128)
    a("""v_add_f32 v45, v32, v33
    v_add_f32 v46, v34, v35
    v_add_f32 v47, v36, v37
    v_add_f32 v48, v38, v39
    v_add_f32 v45, v45, v46
    v_add_f32 v47, v47, v48
    v_add_f32 v45, v45, v47
    v_mov_b32 v46, v45
    v_permlane16_swap_b32 v45, v46
    v_add_f32 v45, v45, v46
    v_mov_b32 v46, v45
    v_permlane32_swap_b32 v45, v46
    v_add_f32 v45, v45, v46""")
    stamp(5)
    for e in range(8): a(f"v_mov_b32 v{16+e}, v{128+4*e}")
    a(f"""ds_write_b128 v54, v[16:19] offset:{L_AO}
    ds_write_b128 v54, v[20:23] offset:{L_AO+16}""")
    exec_set("0x1111", 0)
    a(f"""ds_write_b64 v55, v[44:45] offset:{L_ST}
    s_mov_b64 exec, 1
    ds_write_b32 v58, v59 offset:{L_FL+16}
    s_mov_b64 exec, -1""")
    lds_wait("L_await_a", L_FL+16, 4)
    stamp(6)
    for w in range(4): a(f"ds_read_b128 v[{16+4*w}:{19+4*w}], v56 offset:{L_AO + w*2048}")
    a(f"ds_read_b128 v[32:35], v57 offset:{L_ST}\nds_read_b128 v[36:39], v57 offset:{L_ST+16}")
    a("""s_mov_b32 s60, 0x3fb8aa3b
    v_mov_b32 v42, 0
    s_waitcnt lgkmcnt(0)
    v_max3_f32 v40, v32, v34, v36
    v_max_f32 v40, v40, v38
    v_sub_f32 v32, v32, v40
    v_sub_f32 v34, v34, v40
    v_sub_f32 v36, v36, v40
    v_sub_f32 v38, v38, v40
    v_mul_f32 v32, s60, v32
    v_mul_f32 v34, s60, v34
    v_mul_f32 v36, s60, v36
    v_mul_f32 v38, s60, v38
    v_exp_f32 v32, v32
    v_exp_f32 v34, v34
    v_exp_f32 v36, v36
    v_exp_f32 v38, v38""")
    for k in range(4): a(f"v_mul_f32 v{44+k}, v32, v{16+k}")
    a("v_mul_f32 v41, v32, v33")
    for w, al in ((1, 34), (2, 36), (3, 38)):
        for k in range(4): a(f"v_fmac_f32 v{44+k}, v{al}, v{16+4*w+k}")
        a(f"v_fmac_f32 v41, v{al}, v{al+1}")
    a(f"""v_cndmask_b32 v44, v44, v40, s[62:63]
    v_cndmask_b32 v45, v45, v41, s[62:63]
    v_cndmask_b32 v46, v46, v42, s[62:63]
    v_cndmask_b32 v47, v47, v42, s[62:63]""")
    tag4([44, 45, 46, 47])
    exec_set(-1, 1)
    fast_store("v[44:47]", "v52", "0")
    a(f"""s_mov_b64 exec, 1
    ds_write_b32 v58, v59 offset:{L_FL+32}
    s_mov_b64 exec, -1""")
    stamp(7)
    a(f"s_cmp_eq_u32 s98, 1\ns_cbranch_scc1 L_end\ns_mov_b32 s60, {WS_SLOW}")
    slow_store("v[44:47]", "v52", "s60", -1, 1)
    a("s_branch L_end")

    a.label("L_roleO")
    a(f"""s_sub_u32 s3, s3, 2
    s_lshr_b32 s96, s5, 2
    s_and_b32 s97, s5, 3
    s_lshl_b32 s98, s4, 19
    s_lshl_b32 s99, s96, 16
    s_add_u32 s98, s98, s99
    s_lshl_b32 s99, s3, 15
    s_add_u32 s98, s98, s99
    s_lshl_b32 s99, s97, 8
    s_add_u32 s98, s98, s99
    s_add_u32 s99, s98, 4096
    v_lshlrev_b32 v8, 13, v2
    v_lshl_add_u32 v8, v3, 4, v8
    s_lshl_b32 s100, s4, 3
    s_add_u32 s100, s100, s96
    s_waitcnt lgkmcnt(0)""")
    if opt.ba: a("s_barrier")
    load_epoch()
    if opt.stouch:
        a(f"""s_load_dword s59, s[26:27], 0
        s_add_u32 s60, s16, s98
        s_addc_u32 s61, s17, 0
        s_load_dword s59, s[60:61], 0
        s_lshl_b32 s60, s4, 24
        s_add_u32 s60, s60, {61440*256}
        s_add_u32 s60, s12, s60
        s_addc_u32 s61, s13, 0
        s_load_dword s59, s[60:61], 0
        s_load_dword s59, s[20:21], 0
        s_load_dword s59, s[22:23], 0
        s_load_dword s59, s[24:25], 0
        s_add_u32 s60, s20, 1048576
        s_addc_u32 s61, s21, 0
        s_load_dword s59, s[60:61], 0
        s_add_u32 s60, s22, 1048576
        s_addc_u32 s61, s23, 0
        s_load_dword s59, s[60:61], 0
        s_add_u32 s60, s24, 1048576
        s_addc_u32 s61, s25, 0
        s_load_dword s59, s[60:61], 0
        s_waitcnt lgkmcnt(0)""")
    srd(32, 16, 4194304)
    a(f"""s_lshl_b32 s60, s4, 16
    s_lshr_b32 s61, s96, 1
    s_lshl_b32 s101, s61, 9
    s_add_u32 s60, s60, s101
    s_and_b32 s101, s96, 1
    s_lshl_b32 s101, s101, 8
    s_add_u32 s60, s60, s101
    s_lshl_b32 s101, s3, 7
    s_add_u32 s60, s60, s101
    s_add_u32 s36, s60, {WS_AP}
    s_add_u32 s37, s36, 32768
    v_lshlrev_b32 v9, 11, v3
    v_lshl_add_u32 v9, v2, 5, v9
    s_lshl_b32 s38, s4, 2
    s_add_u32 s38, s38, s61
    s_lshl_b32 s38, s38, 9
    s_add_u32 s38, s38, {WS_ML}
    v_and_b32 v11, 31, v0
    v_lshlrev_b32 v11, 4, v11
    s_lshl_b32 s39, s100, 11
    s_lshl_b32 s61, s97, 9
    s_add_u32 s39, s39, s61
    s_add_u32 s39, s39, {WS_OP}""")
    slow_if_nofast(["s36", "s37", "s38"])
    a("s_waitcnt lgkmcnt(0)")
    make_tag()
    stamp(1)
    if opt.fafter: a("s_barrier")
    a("s_barrier\ns_barrier\ns_barrier")
    for i in range(8):
        a(f"buffer_load_dwordx4 v[{64+4*i}:{67+4*i}], v8, s[32:35], s{98+(i>>2)} offen offset:{(i&3)*1024} {NT}")
    if opt.warm:
        a(f"""s_lshl_b32 s60, s4, 4
        s_and_b32 s61, s5, 15
        s_add_u32 s60, s60, s61
        s_lshl_b32 s60, s60, 4
        s_add_u32 s60, s60, {WS_OP}
        v_lshlrev_b32 v210, 11, v0
        s_cmp_lt_u32 s2, 128
        s_cselect_b32 s61, -1, 1
        s_cmp_eq_u32 s3, 0
        s_cselect_b32 s61, s61, 1
        s_mov_b32 exec_lo, s61
        s_mov_b32 exec_hi, s61
        buffer_load_dword v212, v210, s[40:43], s60 offen sc1
        s_mov_b64 exec, -1""")
    stamp(2)
    transpose_pairs(64, 96, 1 if opt.warm else 0)
    stamp(3)
    lds_wait("L_await_pub", L_FL+32, 4)
    out_addr_setup()
    a(f"s_mov_b32 s59, 0\ns_mov_b32 s101, {WS_SLOW}")
    stamp(4)
    a.label("L_mlpoll")
    a("buffer_load_dwordx4 v[32:35], v11, s[40:43], s38 offen sc1\ns_waitcnt vmcnt(0)")
    check4(12, 32, 14, first=True)
    a("v_cmp_ne_u32 vcc, 0, v12")
    poll_tail("L_mlok", "L_mlpoll", ["s36", "s37", "s38"], once="s101")
    a.label("L_mlok")
    stamp(9)
    count_stamp()
    def ap_gather():
        a("""buffer_load_dwordx4 v[16:19], v9, s[40:43], s36 offen sc1
        buffer_load_dwordx4 v[20:23], v9, s[40:43], s36 offen offset:16 sc1
        buffer_load_dwordx4 v[24:27], v9, s[40:43], s37 offen sc1
        buffer_load_dwordx4 v[28:31], v9, s[40:43], s37 offen offset:16 sc1""")
    ap_gather()
    a("v_and_b32 v32, s58, v32\nv_and_b32 v33, s58, v33\nv_mov_b32 v44, v32")
    for r in (8, 4, 2, 1): a(f"v_max_f32_dpp v44, v44, v44 row_ror:{r} row_mask:0xf bank_mask:0xf")
    a("""v_mov_b32 v45, v44
    v_permlane16_swap_b32 v44, v45
    v_max_f32 v44, v44, v45
    s_mov_b32 s60, 0x3fb8aa3b
    v_sub_f32 v32, v32, v44
    v_mul_f32 v32, s60, v32
    v_exp_f32 v32, v32
    s_nop 0
    v_mul_f32 v45, v32, v33""")
    for r in (8, 4, 2, 1): a(f"v_add_f32_dpp v45, v45, v45 row_ror:{r} row_mask:0xf bank_mask:0xf")
    a("""v_mov_b32 v46, v45
    v_mov_b32 v36, v32
    v_permlane16_swap_b32 v45, v46
    v_permlane16_swap_b32 v32, v36
    v_add_f32 v45, v45, v46
    v_rcp_f32 v45, v45
    s_mov_b32 s59, 0""")
    a.label("L_apchk")
    a("s_waitcnt vmcnt(0)")
    for i in range(4): check4(12, 16+4*i, 14, first=(i == 0))
    a("v_cmp_ne_u32 vcc, 0, v12")
    a(f"s_add_u32 s59, s59, 1\ns_cbranch_vccz L_ook")
    if not opt.forceslow:
        a(f"s_cmp_eq_u32 s59, {NFAST}\ns_cselect_b32 s95, s101, 0\ns_cselect_b32 s101, 0, s101\ns_add_u32 s36, s36, s95\ns_add_u32 s37, s37, s95")
    a(f"s_cmp_gt_u32 s59, {SPIN_MAX}\ns_cbranch_scc1 L_ook")
    ap_gather()
    a("s_branch L_apchk")
    a.label("L_ook")
    stamp(5)
    for i in range(4): mask4(16+4*i)
    for k in range(8): a(f"v_mul_f32 v{16+k}, v32, v{16+k}")
    for k in range(8): a(f"v_fmac_f32 v{16+k}, v36, v{24+k}")
    for r in (8, 4, 2, 1):
        for k in range(8): a(f"v_add_f32_dpp v{16+k}, v{16+k}, v{16+k} row_ror:{r} row_mask:0xf bank_mask:0xf")
    for k in range(8): a(f"v_mul_f32 v{16+k}, v{16+k}, v45")
    for k in range(4): a(f"v_cvt_pk_bf16_f32 v{24+k}, v{16+2*k}, v{17+2*k}")
    mfma_tile(96, 24, 128)
    a("s_cmp_eq_u32 s3, 0\ns_cbranch_scc1 L_o0")
    row_to_lds(0)
    stamp(6)
    a("s_branch L_end")
    a.label("L_o0")
    row_select()
    a(f"""s_cmp_lt_u32 s4, 4
    s_cselect_b32 s60, 32, 24
    s_cmp_lt_u32 s5, s60
    s_cselect_b32 s98, 1, 0
    v_mov_b32 v10, 0
    v_lshlrev_b32 v20, 4, v0
    s_mov_b32 s59, 0""")
    a.label("L_await_rows")
    a(f"""ds_read_b64 v[22:23], v10 offset:{L_FL+56}
    ds_read_b128 v[24:27], v20 offset:{L_OX}
    ds_read_b128 v[28:31], v20 offset:{L_OX+512}
    s_add_u32 s59, s59, 1
    s_waitcnt lgkmcnt(0)
    v_readfirstlane_b32 s60, v22
    v_readfirstlane_b32 s61, v23
    s_xor_b32 s96, s98, 1
    s_or_b32 s61, s61, s96
    s_and_b32 s60, s60, s61
    s_cmp_gt_u32 s59, {SPIN_MAX*16}
    s_cbranch_scc1 L_rows_x
    s_cmp_eq_u32 s60, 0
    s_cbranch_scc1 L_await_rows""")
    a.label("L_rows_x")
    for k in range(4): a(f"v_add_f32 v{16+k}, v{16+k}, v{24+k}")
    a("s_cmp_eq_u32 s98, 0\ns_cbranch_scc1 L_nodownrow")
    for k in range(4): a(f"v_add_f32 v{16+k}, v{16+k}, v{28+k}")
    a.label("L_nodownrow")
    tag4([16, 17, 18, 19])
    exec_set(-1, 0)
    a(f"buffer_store_dwordx4 v[16:19], v13, s[40:43], s39 offen {opt.opflag}")
    a("s_mov_b64 exec, -1")
    stamp(6)
    a("s_cmp_lt_u32 s2, 128\ns_cbranch_scc0 L_end")
    srd(44, 8, 1024)
    a(f"""s_lshl_b32 s60, s4, 4
    s_add_u32 s60, s60, s5
    s_lshl_b32 s61, s60, 3
    v_mov_b32 v13, s61
    buffer_load_dwordx2 v[28:29], v13, s[44:47], 0 offen
    s_lshl_b32 s61, s60, 4
    s_add_u32 s61, s61, {WS_OP}
    v_lshlrev_b32 v12, 11, v0
    s_mov_b32 s59, 0
    buffer_load_dwordx4 v[16:19], v12, s[40:43], s61 offen sc1""")
    a.label("L_fpoll")
    a("buffer_load_dwordx4 v[20:23], v12, s[40:43], s61 offen sc1\ns_waitcnt vmcnt(1)")
    check4(14, 16, 30, first=True)
    a(f"""v_cmp_ne_u32 vcc, 0, v14
    s_add_u32 s59, s59, 1
    s_cbranch_vccz L_fok
    buffer_load_dwordx4 v[16:19], v12, s[40:43], s61 offen sc1
    s_waitcnt vmcnt(1)""")
    check4(14, 20, 30, first=True)
    a(f"""v_cmp_ne_u32 vcc, 0, v14
    s_cbranch_vccz L_fok2
    s_cmp_gt_u32 s59, {SPIN_MAX}
    s_cbranch_scc0 L_fpoll""")
    a.label("L_fok2")
    a("s_waitcnt vmcnt(0)")
    for k in range(4): a(f"v_mov_b32 v{16+k}, v{20+k}")
    a.label("L_fok")
    stamp(7)
    mask4(16)
    for r in (8, 4, 2, 1):
        for k in range(4): a(f"v_add_f32_dpp v{16+k}, v{16+k}, v{16+k} row_ror:{r} row_mask:0xf bank_mask:0xf")
    for k in range(4): a(f"v_add_f32_dpp v{16+k}, v{16+k}, v{16+k} row_bcast:15 row_mask:0xa bank_mask:0xf")
    for k in range(4): a(f"v_add_f32_dpp v{16+k}, v{16+k}, v{16+k} row_bcast:31 row_mask:0xc bank_mask:0xf")
    a("""v_lshlrev_b32 v24, 16, v28
    v_and_b32 v25, 0xffff0000, v28
    v_lshlrev_b32 v26, 16, v29
    v_and_b32 v27, 0xffff0000, v29""")
    for k in range(4): a(f"v_add_f32 v{16+k}, v{16+k}, v{24+k}")
    a("v_cvt_pk_bf16_f32 v16, v16, v17\nv_cvt_pk_bf16_f32 v17, v18, v19")
    srd(44, 26, 1024)
    exec_set(0, "0x80000000")
    a("""buffer_store_dwordx2 v[16:17], v13, s[44:47], 0 offen
    s_cmp_eq_u32 s2, 0
    s_cbranch_scc0 L_noepoch
    v_mov_b32 v18, s7
    v_mov_b32 v19, 0""")
    a("buffer_store_dword v18, v19, s[40:43], 0 offen" + ("" if opt.eplain else " sc1"))
    a.label("L_noepoch")
    a("s_mov_b64 exec, -1")
    stamp(8)
    a.label("L_end")
    if opt.endwait: a("s_waitcnt vmcnt(0)")
    if opt.dbgstamps:
        a("""s_waitcnt lgkmcnt(0)
        s_cmp_eq_u32 s94, 2
        s_cbranch_scc0 L_exit
        s_and_b32 s96, s2, 0xfb
        s_cmp_eq_u32 s96, 0
        s_cbranch_scc0 L_exit
        s_lshl_b32 s96, s2, 3
        s_add_u32 s98, s28, s96
        s_addc_u32 s99, s29, 0
        s_mov_b64 exec, 1
        v_mov_b32 v4, 0""")
        for i in range(8):
            a(f"s_sub_u32 s96, s{64+2*(i+1)}, s64\nv_mov_b32 v2, s96\nglobal_store_dword v4, v2, s[98:99] offset:{4*i}\ns_nop 1")
        a("s_waitcnt vmcnt(0)\ns_branch L_exit")
    if opt.stamps and not opt.dbgstamps:
        a("""s_waitcnt lgkmcnt(0)
        s_lshl_b32 s96, s2, 4
        s_add_u32 s96, s96, s94
        s_lshl_b32 s96, s96, 7
        s_add_u32 s96, s96, 0x4000000
        s_add_u32 s98, s30, s96
        s_addc_u32 s99, s31, 0
        s_mov_b64 exec, 1
        v_mov_b32 v4, 0""")
        for i in range(NSTAMP):
            a(f"v_mov_b32 v2, s{64+2*i}\nv_mov_b32 v3, s{65+2*i}\nglobal_store_dwordx2 v4, v[2:3], s[98:99] offset:{8*i}\ns_nop 1")
        a("v_mov_b32 v2, 0x54414D50\nv_mov_b32 v3, 0x53\nglobal_store_dwordx2 v4, v[2:3], s[98:99] offset:120\ns_waitcnt vmcnt(0)")
    a.label("L_exit")
    a("s_endpgm")
    body = a.finish()
    if opt.stamps:
        init = "  s_mov_b32 s94, s3\n" + "".join(f"  s_mov_b64 s[{64+2*i}:{65+2*i}], 0\n" for i in range(1, NSTAMP))
        body = body.replace("  s_and_b32 s4, s2, 7\n", init + "  s_and_b32 s4, s2, 7\n", 1)
    hdr = f"""; Fused decode step: LayerNorm -> (GQA sliding-window attention + GEGLU FFN) -> residual sum.
; @launch grid=(256,1,1) block=(512,1,1) lds={LDS_BYTES}
.amdgcn_target "amdgcn-amd-amdhsa--gfx950"
.text
.globl {KNAME}
.p2align 8
.type {KNAME},@function
{KNAME}:
"""
    ftr = f""".section .rodata,"a"
.p2align 6
.amdhsa_kernel {KNAME}
  .amdhsa_next_free_vgpr 256
  .amdhsa_next_free_sgpr 102
  .amdhsa_accum_offset 256
  .amdhsa_group_segment_fixed_size 0
  .amdhsa_kernarg_size 96
  .amdhsa_user_sgpr_count 2
  .amdhsa_user_sgpr_kernarg_segment_ptr 1
  .amdhsa_system_sgpr_workgroup_id_x 1
  .amdhsa_float_denorm_mode_32 3
.end_amdhsa_kernel
"""
    return hdr + body + ftr, a.nnop

if __name__ == "__main__":
    import argparse
    ap = argparse.ArgumentParser()
    ap.add_argument("-o", default="out.s")
    ap.add_argument("--stamps", action="store_true")
    ap.add_argument("--nt", default="nt")
    ap.add_argument("--kv", type=int, default=2)
    ap.add_argument("--sleep", type=int, default=1)
    ap.add_argument("--nofast", action="store_true")
    ap.add_argument("--endwait", action="store_true")
    ap.add_argument("--noba", action="store_true")
    ap.add_argument("--fbefore", action="store_true")
    ap.add_argument("--nowarm", action="store_true")
    ap.add_argument("--eplain", action="store_true")
    ap.add_argument("--opflag", default="sc1")
    ap.add_argument("--stouch", action="store_true")
    ap.add_argument("--dbgstamps", action="store_true")
    args = ap.parse_args()
    o = Opt(); o.stamps = args.stamps; o.nt = args.nt; o.kv = args.kv; o.sleep = args.sleep; o.forceslow = args.nofast; o.endwait = args.endwait; o.ba = not args.noba; o.fafter = not args.fbefore; o.warm = not args.nowarm; o.eplain = args.eplain; o.opflag = args.opflag; o.stouch = args.stouch; o.dbgstamps = args.dbgstamps
    if o.dbgstamps: o.stamps = True
    text, nn = build(o)
    open(args.o, "w").write(text)
    print("wrote", args.o, "nops inserted:", nn, "lines:", text.count("\n"))
```

```python
import sys
from asmlib import Asm
KNAME = "parallel_sum__sliding_block_cached__glu_gated_geglu__decode_kernel"

WS_E  = 0
WS_QP = 0x10000
WS_GU = 0x20000
WS_XI = 0x38000
WS_ML = 0x30000
WS_AP = 0x40000
WS_OP = 0x180000
WS_SLOW = 0xC0000
WS_SIZE = 0x20000000
L_XNQ = 0
L_XNF = 1024
L_Q   = 2048
L_AO  = 4096
L_ST  = 12288
L_OX  = 12544
L_XND = 14336
L_FL  = 12416
LDS_BYTES = 16384
SPIN_MAX = 1 << 14
NFAST = 48
NSTAMP = 15

class Opt:
    stamps = False
    nt = "nt"
    kv = 2
    sleep = 1
    fast = True
    forceslow = False
    endwait = False
    opt_t = False
    dry = False
    cpf = True
    v1 = 8
    fsleep = 0
    fsingle = False
    ba = True
    fafter = True
    warm = True
    eplain = False
    opflag = 'sc1'
    stouch = False
    dbgstamps = False
    dbgcnt = False

def build(opt):
    a = Asm()
    NT = opt.nt
    def stamp(i):
        if opt.stamps: a(f"s_memrealtime s[{64+2*i}:{65+2*i}]")
    def count_stamp():
        if opt.stamps: a("s_mov_b32 s92, s59\ns_mov_b32 s93, 0")
    def srd(dst, ptr, size):
        a(f"s_mov_b32 s{dst}, s{ptr}\ns_and_b32 s{dst+1}, s{ptr+1}, 0xffff\ns_mov_b32 s{dst+2}, {size}\ns_mov_b32 s{dst+3}, 0x20000")
    def srd_c(dst, size):
        a(f"s_mov_b32 s{dst+2}, {size}\ns_mov_b32 s{dst+3}, 0x20000")
    def srd_p(dst, ptr):
        a(f"s_mov_b32 s{dst}, s{ptr}\ns_and_b32 s{dst+1}, s{ptr+1}, 0xffff")
    def exec_set(lo, hi):
        a(f"s_mov_b32 exec_lo, {lo}\ns_mov_b32 exec_hi, {hi}")
    def make_tag():
        a("""s_add_u32 s7, s6, 1
        s_mul_i32 s6, s7, 0x01010101
        s_xor_b32 s6, s6, 0x5c3a96f0
        s_and_b32 s56, s6, 0xffff
        s_and_b32 s57, s6, 0xffff0000
        v_mov_b32 v254, s6""")
    def tag4(regs):
        for k, r in enumerate(regs):
            a(f"v_perm_b32 v{r}, v{r}, v254, s{50+k}")
    def check4(acc, r, tmp, first=False):
        a(f"v_perm_b32 v{tmp}, v{r+1}, v{r}, s54")
        a(f"v_perm_b32 v{tmp+1}, v{r+3}, v{r+2}, s55")
        if first: a(f"v_xor_b32 v{acc}, s56, v{tmp}")
        else:     a(f"v_bitop3_b32 v{acc}, v{acc}, v{tmp}, s56 bitop3:0xf6")
        a(f"v_bitop3_b32 v{acc}, v{acc}, v{tmp+1}, s57 bitop3:0xf6")
    def fast_store(data, voff, soff):
        a(f"buffer_store_dwordx4 {data}, {voff}, s[40:43], {soff} offen")
    def slow_store(data, voff, soff, lo, hi):
        exec_set(lo, hi)
        a(f"buffer_store_dwordx4 {data}, {voff}, s[40:43], {soff} offen sc1")
        a("s_mov_b64 exec, -1")
    def slow_if_nofast(offs):
        if opt.forceslow:
            for o in offs: a(f"s_add_u32 {o}, {o}, {WS_SLOW}")
    def poll_tail(ok, again, offs, own=None, once=None):
        a(f"s_add_u32 s59, s59, 1\ns_cbranch_vccz {ok}")
        if own is not None:
            a(f"s_cmp_eq_u32 s59, {NFAST//2}\ns_cbranch_scc0 {again}_ns")
            slow_store(*own)
            a.label(f"{again}_ns")
        if offs and not opt.forceslow:
            if once:
                a(f"s_cmp_eq_u32 s59, {NFAST}\ns_cselect_b32 s95, {once}, 0\ns_cselect_b32 {once}, 0, {once}")
            else:
                a(f"s_cmp_eq_u32 s59, {NFAST}\ns_cselect_b32 s95, {WS_SLOW}, 0")
            for o in offs: a(f"s_add_u32 {o}, {o}, s95")
        a(f"s_cmp_gt_u32 s59, {SPIN_MAX}\ns_cbranch_scc1 {ok}")
        if opt.sleep: a(f"s_sleep {opt.sleep}")
        a(f"s_branch {again}")
    def lds_wait(label, off, nflags):
        a(f"v_mov_b32 v10, 0\ns_mov_b32 s59, 0")
        a.label(label)
        if nflags == 1:
            a(f"ds_read_b32 v12, v10 offset:{off}\ns_add_u32 s59, s59, 1\ns_waitcnt lgkmcnt(0)")
        else:
            a(f"""ds_read_b128 v[12:15], v10 offset:{off}
            s_add_u32 s59, s59, 1
            s_waitcnt lgkmcnt(0)
            v_and_b32 v12, v12, v13
            v_and_b32 v14, v14, v15
            v_and_b32 v12, v12, v14
            s_nop 0""")
        a(f"""v_readfirstlane_b32 s60, v12
        s_cmp_gt_u32 s59, {SPIN_MAX*16}
        s_cbranch_scc1 {label}_x
        s_cmp_eq_u32 s60, 0
        s_cbranch_scc1 {label}""")
        a.label(label + "_x")
    def mask4(r):
        for k in range(4): a(f"v_and_b32 v{r+k}, s58, v{r+k}")
    def wave_sum_to_sgpr(v, s):
        for r in (8, 4, 2, 1):
            a(f"v_add_f32_dpp v{v}, v{v}, v{v} row_ror:{r} row_mask:0xf bank_mask:0xf")
        a(f"v_add_f32_dpp v{v}, v{v}, v{v} row_bcast:15 row_mask:0xa bank_mask:0xf")
        a(f"v_add_f32_dpp v{v}, v{v}, v{v} row_bcast:31 row_mask:0xc bank_mask:0xf")
        a(f"v_readlane_b32 s{s}, v{v}, 63")
    def gemv_tile(R, A, acc, first, B0=160):
        def perms(e, B):
            w = e >> 1; sel = 49 if (e & 1) else 48
            for u in range(4):
                a(f"v_perm_b32 v{B+u}, v{R+(2*u+1)*4+w}, v{R+(2*u)*4+w}, s{sel}")
        perms(0, B0)
        for e in range(8):
            B = B0 + 4*(e & 1)
            if e < 7: perms(e+1, B0 + 4*((e+1) & 1))
            c = "0" if first else f"v[{acc+4*e}:{acc+4*e+3}]"
            a(f"v_mfma_f32_16x16x32_bf16 v[{acc+4*e}:{acc+4*e+3}], v[{A}:{A+3}], v[{B}:{B+3}], {c}")
    def transpose_pairs(R, D, total_after):
        for u in range(4):
            a(f"s_waitcnt vmcnt({6-2*u+total_after})")
            for e in range(8):
                w = e >> 1; sel = 49 if (e & 1) else 48
                a(f"v_perm_b32 v{D+4*e+u}, v{R+(2*u+1)*4+w}, v{R+(2*u)*4+w}, s{sel}")
    def mfma_tile(D, A, acc):
        for e in range(8):
            a(f"v_mfma_f32_16x16x32_bf16 v[{acc+4*e}:{acc+4*e+3}], v[{A}:{A+3}], v[{D+4*e}:{D+4*e+3}], 0")
    def publish_out():
        for k in range(4): a(f"v_cndmask_b32 v{16+k}, v{128+4*k}, v{128+4*(4+k)}, s[62:63]")
        tag4([16, 17, 18, 19])
        exec_set(-1, 0)
        a("buffer_store_dwordx4 v[16:19], v13, s[40:43], s39 offen sc1")
        a("s_mov_b64 exec, -1")
    def row_select():
        for k in range(4): a(f"v_cndmask_b32 v{16+k}, v{128+4*k}, v{128+4*(4+k)}, s[62:63]")
    def row_to_lds(slot):
        row_select()
        a(f"""v_lshlrev_b32 v20, 4, v0
        v_mov_b32 v21, 0
        v_mov_b32 v22, 1""")
        exec_set(-1, 0)
        a(f"""ds_write_b128 v20, v[16:19] offset:{L_OX + 512*slot}
        ds_write_b32 v21, v22 offset:{L_FL + 56 + 4*slot}
        s_mov_b64 exec, -1""")
    def out_addr_setup():
        a("v_and_b32 v12, 16, v0\nv_cmp_ne_u32 s[62:63], 0, v12")
        if opt.opt_t: a("v_lshlrev_b32 v13, 11, v3\nv_lshl_add_u32 v13, v2, 10, v13")
        else: a("v_lshlrev_b32 v13, 5, v3\nv_lshl_add_u32 v13, v2, 4, v13")

    a("s_cmp_ge_u32 s2, 256\ns_cbranch_scc1 L_exit")
    stamp(0)
    a("""s_load_dwordx16 s[8:23], s[0:1], 0
    s_load_dwordx8 s[24:31], s[0:1], 64
    v_lshrrev_b32 v1, 6, v0
    v_and_b32 v0, 63, v0
    v_readfirstlane_b32 s3, v1
    s_and_b32 s4, s2, 7
    s_lshr_b32 s5, s2, 3
    s_cmp_lg_u32 s3, 0""")
    if opt.stamps: a("s_mov_b32 s94, s3")
    a("s_cbranch_scc1 L_notq")

    def consts():
        a("""v_lshrrev_b32 v2, 4, v0
        v_and_b32 v3, 15, v0
        s_mov_b32 s48, 0x05040100
        s_mov_b32 s49, 0x07060302
        s_mov_b32 s50, 0x07060500
        s_mov_b32 s51, 0x07060501
        s_mov_b32 s52, 0x07060502
        s_mov_b32 s53, 0x07060503
        s_mov_b32 s54, 0x0c0c0400
        s_mov_b32 s55, 0x04000c0c
        s_mov_b32 s58, 0xffffff00""")
        if opt.stamps:
            for i in range(1, NSTAMP): a(f"s_mov_b64 s[{64+2*i}:{65+2*i}], 0")

    def load_epoch():
        a("s_load_dword s6, s[30:31], 0")
        srd(40, 30, WS_SIZE)

    def issue_w():
        for tile in range(2):
            for i in range(8):
                r = 64 + (tile*8 + i)*4
                a(f"buffer_load_dwordx4 v[{r}:{r+3}], v50, s[32:35], s36 offen {NT}")
                if tile == 0 and i == 7:
                    a("s_add_u32 s36, s36, s96")
                elif not (tile == 1 and i == 7):
                    a("s_add_u32 s36, s36, s37")
    def x_load():
        srd(44, 8, 1024)
        a("buffer_load_dwordx4 v[4:7], v8, s[44:47], 0 offen")
    def w_voff(stride):
        a(f"""v_and_b32 v50, 56, v0
        v_mul_u32_u24 v50, {stride}, v50
        v_and_b32 v10, 7, v0
        v_lshl_add_u32 v50, v10, 4, v50
        v_lshlrev_b32 v8, 4, v0""")
    def layernorm(lds_xn):
        for k in range(4):
            a(f"v_lshlrev_b32 v{16+2*k}, 16, v{4+k}\nv_and_b32 v{17+2*k}, 0xffff0000, v{4+k}")
        a("""v_add_f32 v24, v16, v17
        v_add_f32 v25, v18, v19
        v_add_f32 v26, v20, v21
        v_add_f32 v27, v22, v23
        v_add_f32 v24, v24, v25
        v_add_f32 v26, v26, v27
        v_add_f32 v24, v24, v26""")
        wave_sum_to_sgpr(24, 60)
        a("v_mov_b32 v25, 0x3b000000\nv_mul_f32 v25, s60, v25")
        for k in range(8): a(f"v_sub_f32 v{32+k}, v{16+k}, v25")
        a("v_mul_f32 v24, v32, v32")
        for k in range(1, 8): a(f"v_fmac_f32 v24, v{32+k}, v{32+k}")
        wave_sum_to_sgpr(24, 61)
        a("""v_mov_b32 v26, 0x3b000000
        v_mul_f32 v26, s61, v26
        v_cvt_pk_bf16_f32 v28, v25, v26
        v_lshlrev_b32 v29, 16, v28
        v_and_b32 v30, 0xffff0000, v28
        v_add_f32 v30, 0x3727c5ac, v30
        v_cvt_pk_bf16_f32 v30, v30, v30
        v_and_b32 v30, 0xffff0000, v30
        v_sqrt_f32 v30, v30
        v_cvt_pk_bf16_f32 v30, v30, v30
        v_and_b32 v30, 0xffff0000, v30
        v_rcp_f32 v30, v30""")
        for k in range(8): a(f"v_sub_f32 v{32+k}, v{16+k}, v29")
        for k in range(4): a(f"v_cvt_pk_bf16_f32 v{40+k}, v{32+2*k}, v{33+2*k}")
        for k in range(4):
            a(f"v_lshlrev_b32 v{32+2*k}, 16, v{40+k}\nv_and_b32 v{33+2*k}, 0xffff0000, v{40+k}")
        for k in range(8): a(f"v_mul_f32 v{32+k}, v{32+k}, v30")
        for k in range(4): a(f"v_cvt_pk_bf16_f32 v{40+k}, v{32+2*k}, v{33+2*k}")
        a(f"""v_add_u32 v8, s95, v8
        v_and_b32 v17, 1, v3
        v_lshlrev_b32 v17, 4, v17
        v_lshl_add_u32 v17, v2, 5, v17
        s_add_u32 s60, s38, s95
        ds_write_b128 v8, v[40:43]
        v_add_u32 v17, s60, v17
        ds_read_b128 v[8:11], v17
        ds_read_b128 v[12:15], v17 offset:128""")
    def slice_store_addr(xi=False):
        a("""v_and_b32 v16, 8, v0
        v_and_b32 v204, 7, v0
        v_lshlrev_b32 v204, 5, v204
        v_lshl_add_u32 v204, v16, 1, v204""")
        if xi:
            a(f"""s_lshl_b32 s60, s4, 9
            s_lshl_b32 s61, s5, 4
            s_add_u32 s60, s60, s61
            s_add_u32 s60, s60, {WS_XI}
            s_sub_u32 s60, s60, s39
            v_cmp_eq_u32 vcc, 16, v0
            v_mov_b32 v18, s60
            s_nop 0
            v_cndmask_b32 v204, v204, v18, vcc""")
    def pretouch(dst, voff, soff, lo, hi):
        exec_set(lo, hi)
        a(f"buffer_load_dwordx4 {dst}, {voff}, s[40:43], {soff} offen sc1")
        a("s_mov_b64 exec, -1")
    def slice_sums():
        a("v_and_b32 v16, 8, v0\nv_cmp_ne_u32 s[62:63], 0, v16")
        for k in range(4):
            a(f"v_cndmask_b32 v{20+k}, v{128+4*k}, v{128+4*(4+k)+1}, s[62:63]")
            a(f"v_cndmask_b32 v{24+k}, v{128+4*(4+k)}, v{128+4*k+1}, s[62:63]")
        for k in range(4):
            a(f"v_add_f32_dpp v{200+k}, v{24+k}, v{20+k} row_ror:8 row_mask:0xf bank_mask:0xf")
    def slice_publish(xi=False):
        if xi:
            a(f"""s_getreg_b32 s60, hwreg(HW_REG_XCC_ID)
            s_and_b32 s60, s60, 0xffff
            s_lshl_b32 s37, s60, 8
            v_cmp_eq_u32 vcc, 16, v0
            v_mov_b32 v16, s37
            s_nop 0""")
            for k in range(4): a(f"v_cndmask_b32 v{200+k}, v{200+k}, v16, vcc")
        tag4([200, 201, 202, 203])
        exec_set("0x1ffff" if xi else "0xffff", 0)
        fast_store("v[200:203]", "v204", "s39")
        a("s_mov_b64 exec, -1")
        a(f"s_add_u32 s38, s39, {WS_SLOW}")
    def core_block():
        xw_ = 1 if opt.warm else 0
        a.label("L_core")
        a(f"s_waitcnt vmcnt({16+xw_}) lgkmcnt(0)")
        stamp(10)
        make_tag()
        layernorm(None)
        stamp(11)
        a.label("L_core_g")
        a(f"s_waitcnt vmcnt({8+xw_}) lgkmcnt(0)")
        gemv_tile(64, 8, 128, True)
        a(f"s_waitcnt vmcnt({xw_})")
        gemv_tile(96, 12, 128, False)
        slice_sums()
        a("""s_cmp_eq_u32 s101, 0
        s_cbranch_scc1 L_roleQ3
        s_cmp_eq_u32 s101, 1
        s_cbranch_scc1 L_roleF3
        s_branch L_roleO2""")

    a.label("L_roleQ")
    a(f"""s_lshr_b32 s97, s5, 3
    s_lshl_b32 s36, s97, 20
    s_lshl_b32 s98, s4, 10
    s_add_u32 s36, s36, s98
    s_and_b32 s96, s5, 7
    s_lshl_b32 s98, s96, 7
    s_add_u32 s36, s36, s98
    s_movk_i32 s37, 8192
    v_and_b32 v50, 56, v0
    v_lshlrev_b32 v50, 13, v50
    v_and_b32 v10, 7, v0
    v_lshl_add_u32 v50, v10, 4, v50
    v_lshlrev_b32 v8, 4, v0
    s_movk_i32 s46, 1024
    s_mov_b32 s47, 0x20000
    s_mov_b32 s34, 4194304
    s_mov_b32 s35, s47
    s_mov_b32 s96, {57*8192}
    s_waitcnt lgkmcnt(0)""")
    srd_p(44, 8)
    a("buffer_load_dwordx4 v[4:7], v8, s[44:47], 0 offen")
    srd_p(32, 14)
    issue_w()
    a("s_barrier\ns_branch L_roleQ2")
    a.label("L_notq")
    a("s_cmp_lt_u32 s3, 4\ns_cbranch_scc1 L_fo")
    a(f"""s_sub_u32 s3, s3, 4
    s_lshl_b32 s96, s4, 24
    s_lshr_b32 s97, s5, 3
    s_lshl_b32 s97, s97, 18
    s_add_u32 s96, s96, s97
    s_and_b32 s97, s5, 7
    s_lshl_b32 s97, s97, 10
    s_add_u32 s96, s96, s97
    s_lshl_b32 s97, s3, 13
    s_add_u32 s96, s96, s97
    s_add_u32 s96, s96, {61440*256}
    s_add_u32 s97, s96, 131072
    v_and_b32 v8, 3, v0
    v_lshlrev_b32 v8, 15, v8
    v_bfe_u32 v9, v0, 2, 2
    v_lshl_add_u32 v8, v9, 8, v8
    v_lshrrev_b32 v2, 4, v0
    v_lshl_add_u32 v8, v2, 4, v8
    s_mov_b32 s34, 134217728
    s_mov_b32 s35, 0x20000
    s_waitcnt lgkmcnt(0)""")
    srd_p(32, 10)
    a("s_barrier")
    for T in range(2):
        for t in range(4):
            r = 64 + (T*4 + t)*4
            a(f"buffer_load_dwordx4 v[{r}:{r+3}], v8, s[32:35], s{96+T} offen offset:{t*64} {NT}")
    a("s_branch L_roleA")
    a.label("L_fo")
    a("s_barrier")
    a("s_cmp_lt_u32 s3, 2\ns_cbranch_scc1 L_roleF")
    if opt.dry:
        a(f"""s_mov_b32 s101, 2
        s_movk_i32 s95, {L_XND}
        s_mov_b32 s38, 0
        v_lshlrev_b32 v8, 4, v0
        v_lshrrev_b32 v2, 4, v0
        v_and_b32 v3, 15, v0
        s_cmp_eq_u32 s3, 3
        s_cbranch_scc1 L_core_g""")
        core_block()
    else:
        a("s_branch L_roleO2")
        core_block()
    a.label("L_roleQ2")
    a("s_setprio 3")
    a(f"""s_and_b32 s96, s5, 7
    s_lshl_b32 s38, s97, 8
    s_lshl_b32 s39, s4, 13
    s_lshl_b32 s98, s97, 11
    s_add_u32 s39, s39, s98
    s_lshl_b32 s98, s96, 8
    s_add_u32 s39, s39, s98
    s_add_u32 s39, s39, {WS_QP}""")
    consts()
    load_epoch()
    slice_store_addr(xi=True)
    if opt.warm: pretouch("v[208:211]", "v204", "s39", "0x1ffff", 0)
    a(f"v_mov_b32 v16, 0\nv_lshlrev_b32 v17, 2, v0")
    exec_set(-1, 0)
    a(f"ds_write_b32 v17, v16 offset:{L_FL}\ns_mov_b64 exec, -1")
    stamp(1)
    xw = 1 if opt.warm else 0
    a(f"s_mov_b32 s101, 0\ns_mov_b32 s95, {L_XNQ}\ns_branch L_core")
    a.label("L_roleQ3")
    slice_publish(xi=True)
    stamp(4)
    a("s_barrier")
    if opt.fafter: a("s_barrier")
    a(f"""s_lshl_b32 s98, s4, 9
    s_add_u32 s98, s98, {WS_XI}
    v_and_b32 v9, 31, v0
    v_lshlrev_b32 v9, 4, v9
    s_mov_b32 s59, 0""")
    slow_if_nofast(["s98"])
    a("s_barrier")
    stamp(5)
    a("buffer_load_dwordx4 v[96:99], v9, s[40:43], s98 offen sc1")
    a("s_barrier")
    a("s_branch L_qchk")
    a.label("L_qretry")
    a("buffer_load_dwordx4 v[96:99], v9, s[40:43], s98 offen sc1")
    a.label("L_qchk")
    a("s_waitcnt vmcnt(0)")
    check4(16, 96, 18, first=True)
    a("v_cmp_ne_u32 vcc, 0, v16")
    poll_tail("L_qok", "L_qretry", ["s98"], own=("v[200:203]", "v204", "s38", "0x1ffff", 0))
    a.label("L_qok")
    stamp(6)
    count_stamp()
    a(f"""v_and_b32 v96, s58, v96
    v_cmp_ne_u32 vcc, s37, v96
    v_mov_b32 v19, 0
    s_nop 2
    s_cmp_lg_u64 vcc, 0
    s_cselect_b32 s60, 3, 1
    s_cmp_ge_u32 s59, {NFAST//2}
    s_cselect_b32 s60, 3, s60
    v_mov_b32 v18, s60
    s_nop 0
    ds_write_b32 v19, v18 offset:{L_FL}
    s_cmp_eq_u32 s60, 1
    s_cbranch_scc1 L_qend""")
    slow_store("v[200:203]", "v204", "s38", "0x1ffff", 0)
    a.label("L_qend")
    stamp(7)
    a("s_branch L_end")

    a.label("L_roleF")
    consts()
    a(f"""s_lshl_b32 s96, s4, 2
    s_mul_i32 s97, s4, 3
    s_add_u32 s97, s97, 4
    s_cmp_lt_u32 s4, 4
    s_cselect_b32 s96, s96, s97
    s_cselect_b32 s97, 32, 24
    s_cmp_lt_u32 s5, s97
    s_cselect_b32 s100, 1, 0
    s_lshr_b32 s97, s5, 3
    s_add_u32 s98, s96, s97
    s_lshr_b32 s99, s5, 1
    s_and_b32 s99, s99, 3
    s_mul_i32 s36, s99, {128*3584}
    s_lshl_b32 s98, s98, 7
    s_add_u32 s36, s36, s98
    s_mov_b32 s37, 3584
    s_lshl_b32 s38, s99, 8
    s_lshl_b32 s39, s4, 13
    s_and_b32 s101, s5, 1
    s_lshl_b32 s98, s101, 12
    s_add_u32 s39, s39, s98
    s_lshl_b32 s98, s99, 10
    s_add_u32 s39, s39, s98
    s_lshl_b32 s98, s97, 8
    s_add_u32 s39, s39, s98
    s_add_u32 s39, s39, {WS_GU}
    s_lshl_b32 s96, s96, 16
    s_lshr_b32 s97, s5, 2
    s_lshl_b32 s98, s97, 15
    s_add_u32 s98, s98, s96
    s_and_b32 s97, s5, 3
    s_lshl_b32 s99, s97, 8
    s_add_u32 s98, s98, s99
    s_add_u32 s99, s98, 4096
    s_mov_b32 s96, {57*3584}""")
    w_voff(3584)
    a("s_setprio 2")
    a("s_waitcnt lgkmcnt(0)")
    x_load()
    a("""s_cmp_eq_u32 s101, 0
    s_cselect_b32 s60, s20, s22
    s_cselect_b32 s61, s21, s23""")
    srd(32, 60, 1835008)
    a("s_cmp_eq_u32 s100, 0\ns_cbranch_scc1 L_fskip")
    if opt.fafter:
        load_epoch()
        slice_store_addr()
        a("s_setprio 3")
        a("s_barrier")
        issue_w()
        a("s_barrier")
        if opt.warm: pretouch("v[208:211]", "v204", "s39", "0xffff", 0)
    else:
        issue_w()
        load_epoch()
        slice_store_addr()
        if opt.warm: pretouch("v[208:211]", "v204", "s39", "0xffff", 0)
        a("s_barrier")
    a(f"""s_mov_b32 s101, 1
    s_movk_i32 s95, {L_XNF}
    s_branch L_core""")
    a.label("L_roleF3")
    slice_publish()
    srd(44, 24, 1835008)
    a("""v_lshlrev_b32 v51, 13, v2
    v_lshl_add_u32 v51, v3, 4, v51""")
    stamp(2)
    a("s_setprio 0")
    a("s_barrier\ns_barrier")
    for i in range(8):
        a(f"buffer_load_dwordx4 v[{168+4*i}:{171+4*i}], v51, s[44:47], s{98+(i>>2)} offen offset:{(i&3)*1024} {NT}")
    stamp(3)
    a(f"""v_lshrrev_b32 v56, 3, v3
    v_lshlrev_b32 v56, 12, v56
    v_and_b32 v57, 3, v3
    v_lshl_add_u32 v56, v57, 10, v56
    v_and_b32 v57, 4, v3
    v_lshl_add_u32 v56, v57, 2, v56
    v_lshl_add_u32 v56, v2, 5, v56
    s_lshl_b32 s98, s4, 13
    s_lshr_b32 s99, s5, 2
    s_lshl_b32 s96, s99, 7
    s_add_u32 s98, s98, s96
    s_add_u32 s98, s98, {WS_GU}
    s_mov_b32 s59, 0""")
    slow_if_nofast(["s98"])
    out_addr_setup()
    for u in range(4):
        a(f"s_waitcnt vmcnt({6-2*u + (1 if u else 0)})")
        for e in range(8):
            w = e >> 1; sel = 49 if (e & 1) else 48
            a(f"v_perm_b32 v{64+4*e+u}, v{168+(2*u+1)*4+w}, v{168+(2*u)*4+w}, s{sel}")
        if u == 0: a("buffer_load_dwordx4 v[32:35], v56, s[40:43], s98 offen sc1")
    stamp(4)
    a.label("L_gpoll")
    a("buffer_load_dwordx4 v[36:39], v56, s[40:43], s98 offen sc1\ns_waitcnt vmcnt(1)")
    check4(12, 32, 14, first=True)
    a("v_cmp_ne_u32 vcc, 0, v12\ns_cbranch_vccz L_gokA")
    a("buffer_load_dwordx4 v[32:35], v56, s[40:43], s98 offen sc1\ns_waitcnt vmcnt(1)")
    check4(12, 36, 14, first=True)
    a("v_cmp_ne_u32 vcc, 0, v12")
    poll_tail("L_gokB", "L_gpoll", ["s98"], own=("v[200:203]", "v204", "s38", "0xffff", 0))
    a.label("L_gokB")
    for k in range(4): a(f"v_and_b32 v{40+k}, s58, v{36+k}")
    a("s_branch L_gok")
    a.label("L_gokA")
    for k in range(4): a(f"v_and_b32 v{40+k}, s58, v{32+k}")
    a.label("L_gok")
    stamp(5)
    count_stamp()
    for q in ("[1,0,3,2]", "[2,3,0,1]"):
        for k in range(4): a(f"v_add_f32_dpp v{40+k}, v{40+k}, v{40+k} quad_perm:{q} row_mask:0xf bank_mask:0xf")
    a("v_cvt_pk_bf16_f32 v44, v40, v41\nv_cvt_pk_bf16_f32 v45, v42, v43")
    a("v_lshlrev_b32 v40, 16, v44\nv_and_b32 v41, 0xffff0000, v44\nv_lshlrev_b32 v42, 16, v45\nv_and_b32 v43, 0xffff0000, v45")
    a("v_and_b32 v12, 8, v0\nv_cmp_ne_u32 vcc, 0, v12")
    for k in range(4): a(f"v_mov_b32_dpp v{44+k}, v{40+k} row_ror:8 row_mask:0xf bank_mask:0xf")
    for k in range(4):
        a(f"v_cndmask_b32 v{48+k}, v{40+k}, v{44+k}, vcc")
        a(f"v_cndmask_b32 v{52+k}, v{44+k}, v{40+k}, vcc")
    a("s_mov_b32 s60, 0x3d372713\ns_mov_b32 s61, 0xc0135761")
    for k in range(4): a(f"v_mul_f32 v{40+k}, v{48+k}, v{48+k}")
    for k in range(4): a(f"v_fma_f32 v{40+k}, v{40+k}, s60, 1.0")
    for k in range(4): a(f"v_mul_f32 v{40+k}, v{40+k}, v{48+k}")
    for k in range(4): a(f"v_mul_f32 v{40+k}, s61, v{40+k}")
    for k in range(4): a(f"v_exp_f32 v{40+k}, v{40+k}")
    for k in range(4): a(f"v_add_f32 v{40+k}, 1.0, v{40+k}")
    for k in range(4): a(f"v_rcp_f32 v{40+k}, v{40+k}")
    for k in range(4): a(f"v_mul_f32 v{40+k}, v{40+k}, v{48+k}")
    a("v_cvt_pk_bf16_f32 v44, v40, v41\nv_cvt_pk_bf16_f32 v45, v42, v43")
    a("v_lshlrev_b32 v40, 16, v44\nv_and_b32 v41, 0xffff0000, v44\nv_lshlrev_b32 v42, 16, v45\nv_and_b32 v43, 0xffff0000, v45")
    for k in range(4): a(f"v_mul_f32 v{40+k}, v{40+k}, v{52+k}")
    a("v_cvt_pk_bf16_f32 v44, v40, v41\nv_cvt_pk_bf16_f32 v45, v42, v43")
    a("v_and_b32 v12, 4, v0\nv_cmp_ne_u32 vcc, 0, v12")
    a("v_mov_b32_dpp v46, v44 row_ror:4 row_mask:0xf bank_mask:0xf\nv_mov_b32_dpp v47, v45 row_ror:4 row_mask:0xf bank_mask:0xf")
    a("""v_cndmask_b32 v24, v44, v46, vcc
    v_cndmask_b32 v25, v45, v47, vcc
    v_cndmask_b32 v26, v46, v44, vcc
    v_cndmask_b32 v27, v47, v45, vcc""")
    mfma_tile(64, 24, 128)
    row_to_lds(1)
    stamp(6)
    lds_wait("L_fawait_col", L_FL, 1)
    a("s_cmp_eq_u32 s60, 1\ns_cbranch_scc1 L_end")
    slow_store("v[200:203]", "v204", "s38", "0xffff", 0)
    a("s_branch L_end")
    a.label("L_fskip")
    if opt.fafter: a("s_barrier")
    a("s_barrier\ns_barrier\ns_barrier\ns_branch L_end")

    a.label("L_roleA")
    a("s_setprio 2")
    consts()
    a("""v_lshlrev_b32 v9, 8, v2
    v_lshl_add_u32 v9, v3, 4, v9""")
    srd(36, 12, 134217728)
    load_epoch()
    stamp(1)
    a("s_barrier")
    if opt.fafter: a("s_barrier")
    def vload(i):
        r = 96 + i*4
        a(f"buffer_load_dwordx4 v[{r}:{r+3}], v9, s[36:39], s99 offen {NT}")
        if i < 7: a("s_add_u32 s99, s99, 32768")
    a("s_mov_b32 s99, s96")
    for i in range(opt.v1): vload(i)
    a("s_mov_b64 s[44:45], s[36:37]\ns_mov_b64 s[46:47], s[38:39]")
    a("s_waitcnt lgkmcnt(0)")
    make_tag()
    a(f"""s_lshl_b32 s36, s4, 16
    s_lshl_b32 s37, s5, 4
    s_add_u32 s36, s36, s37
    s_lshl_b32 s37, s3, 14
    s_add_u32 s36, s36, s37
    s_add_u32 s36, s36, {WS_AP}
    v_lshlrev_b32 v52, 9, v0
    v_add_u32 v52, s36, v52
    s_lshl_b32 s36, s4, 2
    s_add_u32 s36, s36, s3
    s_lshl_b32 s36, s36, 9
    s_lshl_b32 s37, s5, 4
    s_add_u32 s36, s36, s37
    s_add_u32 s36, s36, {WS_ML}
    v_mov_b32 v53, s36
    v_cmp_eq_u32 s[62:63], 32, v0
    s_lshl_b32 s36, s3, 11
    v_lshlrev_b32 v54, 9, v2
    v_lshl_add_u32 v54, v3, 5, v54
    v_add_u32 v54, s36, v54
    s_lshl_b32 s36, s3, 3
    v_lshrrev_b32 v55, 2, v3
    v_lshlrev_b32 v55, 5, v55
    v_add_u32 v55, s36, v55
    v_cndmask_b32 v52, v52, v53, s[62:63]
    s_lshl_b32 s36, s3, 9
    v_and_b32 v56, 31, v0
    v_lshlrev_b32 v56, 4, v56
    v_add_u32 v56, s36, v56
    s_lshl_b32 s36, s3, 5
    v_mov_b32 v57, s36
    s_lshl_b32 s36, s3, 2
    v_mov_b32 v58, s36
    v_mov_b32 v59, 1
    v_lshrrev_b32 v60, 2, v3
    v_lshlrev_b32 v60, 8, v60
    v_lshl_add_u32 v60, v2, 4, v60""")
    a(f"""s_lshl_b32 s96, s4, 13
    s_lshl_b32 s97, s3, 9
    s_add_u32 s96, s96, s97
    s_add_u32 s96, s96, {WS_QP}
    v_lshrrev_b32 v61, 5, v0
    v_lshlrev_b32 v61, 11, v61
    v_and_b32 v62, 31, v0
    v_lshl_add_u32 v61, v62, 4, v61
    s_lshl_b32 s97, s3, 8
    v_lshlrev_b32 v62, 3, v62
    v_add_u32 v62, s97, v62
    s_add_u32 s97, s96, 4096
    s_mov_b32 s59, 0
    s_mov_b32 s101, {WS_SLOW}""")
    slow_if_nofast(["s96", "s97"])
    stamp(2)
    a(f"s_waitcnt vmcnt({opt.v1-opt.kv})")
    stamp(3)
    a("s_barrier")
    def a_qgather():
        a("buffer_load_dwordx4 v[16:19], v61, s[40:43], s96 offen sc1\nbuffer_load_dwordx4 v[20:23], v61, s[40:43], s97 offen sc1")
    a_qgather()
    for i in range(opt.v1, 8):
        r = 96 + i*4
        a(f"buffer_load_dwordx4 v[{r}:{r+3}], v9, s[44:47], s99 offen {NT}")
        if i < 7: a("s_add_u32 s99, s99, 32768")
    a("s_barrier")
    if opt.warm: pretouch("v[200:203]", "v52", "0", -1, 1)
    xa = 1 if opt.warm else 0
    nlate = 8 - opt.v1
    def vperms(u):
        for e in range(8):
            w = e >> 1; sel = 49 if (e & 1) else 48
            a(f"v_perm_b32 v{160+4*e+u}, v{96+(2*u+1)*4+w}, v{96+(2*u)*4+w}, s{sel}")
    for u in range(4):
        if 2*(u+1) <= opt.v1:
            a(f"s_waitcnt vmcnt({opt.v1 - 2*(u+1) + 2 + nlate + xa})")
            vperms(u)
    if nlate == 0: stamp(9)
    a(f"s_waitcnt vmcnt({xa + nlate})\ns_branch L_aqchk")
    a.label("L_aqretry")
    a_qgather()
    a("s_waitcnt vmcnt(0)")
    a.label("L_aqchk")
    check4(12, 16, 14, first=True)
    check4(12, 20, 14)
    a("v_cmp_ne_u32 vcc, 0, v12")
    poll_tail("L_aqok", "L_aqretry", ["s96", "s97"], once="s101")
    a.label("L_aqok")
    stamp(8)
    mask4(16); mask4(20)
    for k in range(4): a(f"v_add_f32 v{16+k}, v{16+k}, v{20+k}")
    for k in range(4): a(f"v_mov_b32 v{20+k}, v{16+k}")
    for k in range(4): a(f"v_permlane32_swap_b32 v{16+k}, v{20+k}")
    for k in range(4): a(f"v_add_f32 v{16+k}, v{16+k}, v{20+k}")
    a(f"""v_cvt_pk_bf16_f32 v20, v16, v17
    v_cvt_pk_bf16_f32 v21, v18, v19
    ds_write_b64 v62, v[20:21] offset:{L_Q}""")
    exec_set(1, 0)
    a(f"ds_write_b32 v58, v59 offset:{L_FL+64}\ns_mov_b64 exec, -1")
    lds_wait("L_await_q", L_FL+64, 4)
    stamp(4)
    for t in range(4):
        a(f"ds_read_b128 v[{16+4*t}:{19+4*t}], v60 offset:{L_Q + t*64}")
    a("s_waitcnt lgkmcnt(0)")
    for t in range(4):
        for T in range(2):
            c = "0" if t == 0 else f"v[{32+4*T}:{35+4*T}]"
            a(f"v_mfma_f32_16x16x32_bf16 v[{32+4*T}:{35+4*T}], v[{64+(T*4+t)*4}:{67+(T*4+t)*4}], v[{16+4*t}:{19+4*t}], {c}")
    a("s_mov_b32 s60, 0x3db504f3")
    for k in range(4): a(f"v_cvt_pk_bf16_f32 v{40+k}, v{32+2*k}, v{33+2*k}")
    for k in range(4): a(f"v_lshlrev_b32 v{32+2*k}, 16, v{40+k}\nv_and_b32 v{33+2*k}, 0xffff0000, v{40+k}")
    for k in range(8): a(f"v_mul_f32 v{32+k}, s60, v{32+k}")
    for k in range(4): a(f"v_cvt_pk_bf16_f32 v{40+k}, v{32+2*k}, v{33+2*k}")
    for k in range(4): a(f"v_lshlrev_b32 v{32+2*k}, 16, v{40+k}\nv_and_b32 v{33+2*k}, 0xffff0000, v{40+k}")
    a("""v_max3_f32 v44, v32, v33, v34
    v_max3_f32 v45, v35, v36, v37
    v_max3_f32 v44, v44, v38, v39
    v_max_f32 v44, v44, v45
    v_mov_b32 v45, v44
    v_permlane16_swap_b32 v44, v45
    v_max_f32 v44, v44, v45
    v_mov_b32 v45, v44
    v_permlane32_swap_b32 v44, v45
    v_max_f32 v44, v44, v45
    s_mov_b32 s60, 0x3fb8aa3b
    v_mul_f32 v46, s60, v44""")
    for k in range(8): a(f"v_fma_f32 v{32+k}, v{32+k}, s60, -v46")
    for k in range(8): a(f"v_exp_f32 v{32+k}, v{32+k}")
    for k in range(4): a(f"v_cvt_pk_bf16_f32 v{40+k}, v{32+2*k}, v{33+2*k}")
    if 8 - opt.v1:
        for u in range(4):
            if 2*(u+1) > opt.v1:
                a(f"s_waitcnt vmcnt({8 - 2*(u+1) + xa})")
                vperms(u)
        stamp(9)
    mfma_tile(160, 40, 128)
    a("""v_add_f32 v45, v32, v33
    v_add_f32 v46, v34, v35
    v_add_f32 v47, v36, v37
    v_add_f32 v48, v38, v39
    v_add_f32 v45, v45, v46
    v_add_f32 v47, v47, v48
    v_add_f32 v45, v45, v47
    v_mov_b32 v46, v45
    v_permlane16_swap_b32 v45, v46
    v_add_f32 v45, v45, v46
    v_mov_b32 v46, v45
    v_permlane32_swap_b32 v45, v46
    v_add_f32 v45, v45, v46""")
    stamp(5)
    for e in range(8): a(f"v_mov_b32 v{16+e}, v{128+4*e}")
    a(f"""ds_write_b128 v54, v[16:19] offset:{L_AO}
    ds_write_b128 v54, v[20:23] offset:{L_AO+16}""")
    exec_set("0x1111", 0)
    a(f"""ds_write_b64 v55, v[44:45] offset:{L_ST}
    s_mov_b64 exec, 1
    ds_write_b32 v58, v59 offset:{L_FL+16}
    s_mov_b64 exec, -1""")
    lds_wait("L_await_a", L_FL+16, 4)
    stamp(6)
    for w in range(4): a(f"ds_read_b128 v[{16+4*w}:{19+4*w}], v56 offset:{L_AO + w*2048}")
    a(f"ds_read_b128 v[32:35], v57 offset:{L_ST}\nds_read_b128 v[36:39], v57 offset:{L_ST+16}")
    a("""s_mov_b32 s60, 0x3fb8aa3b
    v_mov_b32 v42, 0
    s_waitcnt lgkmcnt(0)
    v_max3_f32 v40, v32, v34, v36
    v_max_f32 v40, v40, v38
    v_sub_f32 v32, v32, v40
    v_sub_f32 v34, v34, v40
    v_sub_f32 v36, v36, v40
    v_sub_f32 v38, v38, v40
    v_mul_f32 v32, s60, v32
    v_mul_f32 v34, s60, v34
    v_mul_f32 v36, s60, v36
    v_mul_f32 v38, s60, v38
    v_exp_f32 v32, v32
    v_exp_f32 v34, v34
    v_exp_f32 v36, v36
    v_exp_f32 v38, v38""")
    for k in range(4): a(f"v_mul_f32 v{44+k}, v32, v{16+k}")
    a("v_mul_f32 v41, v32, v33")
    for w, al in ((1, 34), (2, 36), (3, 38)):
        for k in range(4): a(f"v_fmac_f32 v{44+k}, v{al}, v{16+4*w+k}")
        a(f"v_fmac_f32 v41, v{al}, v{al+1}")
    a(f"""v_cndmask_b32 v44, v44, v40, s[62:63]
    v_cndmask_b32 v45, v45, v41, s[62:63]
    v_cndmask_b32 v46, v46, v42, s[62:63]
    v_cndmask_b32 v47, v47, v42, s[62:63]""")
    tag4([44, 45, 46, 47])
    exec_set(-1, 1)
    fast_store("v[44:47]", "v52", "0")
    a(f"""s_mov_b64 exec, 1
    ds_write_b32 v58, v59 offset:{L_FL+32}
    s_mov_b64 exec, -1""")
    stamp(7)
    lds_wait("L_await_col", L_FL, 1)
    a(f"s_cmp_eq_u32 s60, 1\ns_cbranch_scc1 L_end\ns_mov_b32 s60, {WS_SLOW}")
    slow_store("v[44:47]", "v52", "s60", -1, 1)
    a("s_branch L_end")

    a.label("L_roleO2")
    consts()
    a(f"""s_sub_u32 s3, s3, 2
    s_lshr_b32 s96, s5, 2
    s_and_b32 s97, s5, 3
    s_lshl_b32 s98, s4, 19
    s_lshl_b32 s99, s96, 16
    s_add_u32 s98, s98, s99
    s_lshl_b32 s99, s3, 15
    s_add_u32 s98, s98, s99
    s_lshl_b32 s99, s97, 8
    s_add_u32 s98, s98, s99
    s_add_u32 s99, s98, 4096
    v_lshlrev_b32 v8, 13, v2
    v_lshl_add_u32 v8, v3, 4, v8
    s_lshl_b32 s100, s4, 3
    s_add_u32 s100, s100, s96
    s_waitcnt lgkmcnt(0)""")
    load_epoch()
    if opt.stouch:
        a(f"""s_load_dword s59, s[26:27], 0
        s_add_u32 s60, s16, s98
        s_addc_u32 s61, s17, 0
        s_load_dword s59, s[60:61], 0
        s_lshl_b32 s60, s4, 24
        s_add_u32 s60, s60, {61440*256}
        s_add_u32 s60, s12, s60
        s_addc_u32 s61, s13, 0
        s_load_dword s59, s[60:61], 0
        s_load_dword s59, s[20:21], 0
        s_load_dword s59, s[22:23], 0
        s_load_dword s59, s[24:25], 0
        s_add_u32 s60, s20, 1048576
        s_addc_u32 s61, s21, 0
        s_load_dword s59, s[60:61], 0
        s_add_u32 s60, s22, 1048576
        s_addc_u32 s61, s23, 0
        s_load_dword s59, s[60:61], 0
        s_add_u32 s60, s24, 1048576
        s_addc_u32 s61, s25, 0
        s_load_dword s59, s[60:61], 0
        s_waitcnt lgkmcnt(0)""")
    srd(32, 16, 4194304)
    a(f"""s_lshl_b32 s60, s4, 16
    s_lshr_b32 s61, s96, 1
    s_lshl_b32 s101, s61, 14
    s_add_u32 s60, s60, s101
    s_and_b32 s101, s96, 1
    s_lshl_b32 s101, s101, 13
    s_add_u32 s60, s60, s101
    s_lshl_b32 s101, s3, 12
    s_add_u32 s60, s60, s101
    s_add_u32 s36, s60, {WS_AP}
    s_mov_b32 s37, s36
    v_lshlrev_b32 v9, 10, v2
    v_lshl_add_u32 v9, v3, 4, v9
    s_lshl_b32 s38, s4, 2
    s_add_u32 s38, s38, s61
    s_lshl_b32 s38, s38, 9
    s_add_u32 s38, s38, {WS_ML}
    v_and_b32 v11, 31, v0
    v_lshlrev_b32 v11, 4, v11
    """)
    if opt.opt_t:
        a(f"""s_lshl_b32 s39, s100, 4
        s_lshl_b32 s61, s97, 15
        s_add_u32 s39, s39, s61
        s_add_u32 s39, s39, {WS_OP}""")
    else:
        a(f"""s_lshl_b32 s39, s100, 11
        s_lshl_b32 s61, s97, 9
        s_add_u32 s39, s39, s61
        s_add_u32 s39, s39, {WS_OP}""")
    slow_if_nofast(["s36", "s37", "s38"])
    a("s_waitcnt lgkmcnt(0)")
    make_tag()
    stamp(1)
    if opt.fafter: a("s_barrier")
    a("s_barrier\ns_barrier\ns_barrier")
    for i in range(8):
        a(f"buffer_load_dwordx4 v[{64+4*i}:{67+4*i}], v8, s[32:35], s{98+(i>>2)} offen offset:{(i&3)*1024} {NT}")
    if opt.warm:
        a(f"""s_lshl_b32 s60, s4, 4
        s_and_b32 s61, s5, 15
        s_add_u32 s60, s60, s61
        s_lshl_b32 s60, s60, {10 if opt.opt_t else 4}
        s_add_u32 s60, s60, {WS_OP}
        v_lshlrev_b32 v210, {4 if opt.opt_t else 11}, v0
        s_cmp_lt_u32 s2, 128
        s_cselect_b32 s61, -1, 1
        s_cmp_eq_u32 s3, 0
        s_cselect_b32 s61, s61, 1
        s_mov_b32 exec_lo, s61
        s_mov_b32 exec_hi, s61
        buffer_load_dword v212, v210, s[40:43], s60 offen sc1
        s_mov_b64 exec, -1""")
    stamp(2)
    transpose_pairs(64, 96, 1 if opt.warm else 0)
    stamp(3)
    lds_wait("L_await_pub", L_FL+32, 4)
    out_addr_setup()
    a(f"s_mov_b32 s59, 0\ns_mov_b32 s101, {WS_SLOW}")
    stamp(4)
    a.label("L_mlpoll")
    a("buffer_load_dwordx4 v[32:35], v11, s[40:43], s38 offen sc1\ns_waitcnt vmcnt(0)")
    check4(12, 32, 14, first=True)
    a("v_cmp_ne_u32 vcc, 0, v12")
    poll_tail("L_mlok", "L_mlpoll", ["s36", "s37", "s38"], once="s101")
    a.label("L_mlok")
    stamp(9)
    count_stamp()
    def ap_gather():
        a("""buffer_load_dwordx4 v[16:19], v9, s[40:43], s36 offen sc1
        buffer_load_dwordx4 v[20:23], v9, s[40:43], s36 offen offset:512 sc1
        buffer_load_dwordx4 v[24:27], v9, s[40:43], s36 offen offset:256 sc1
        buffer_load_dwordx4 v[28:31], v9, s[40:43], s36 offen offset:768 sc1""")
    ap_gather()
    a("v_and_b32 v32, s58, v32\nv_and_b32 v33, s58, v33\nv_mov_b32 v44, v32")
    for r in (8, 4, 2, 1): a(f"v_max_f32_dpp v44, v44, v44 row_ror:{r} row_mask:0xf bank_mask:0xf")
    a("""v_mov_b32 v45, v44
    v_permlane16_swap_b32 v44, v45
    v_max_f32 v44, v44, v45
    s_mov_b32 s60, 0x3fb8aa3b
    v_sub_f32 v32, v32, v44
    v_mul_f32 v32, s60, v32
    v_exp_f32 v32, v32
    s_nop 0
    v_mul_f32 v45, v32, v33""")
    for r in (8, 4, 2, 1): a(f"v_add_f32_dpp v45, v45, v45 row_ror:{r} row_mask:0xf bank_mask:0xf")
    a("""v_mov_b32 v46, v45
    v_mov_b32 v36, v32
    v_permlane16_swap_b32 v45, v46
    v_permlane16_swap_b32 v32, v36
    v_add_f32 v45, v45, v46
    v_rcp_f32 v45, v45
    s_mov_b32 s59, 0
    s_nop 0
    v_mul_f32 v32, v32, v45
    v_mul_f32 v36, v36, v45""")
    a.label("L_apchk")
    a("s_waitcnt vmcnt(0)")
    for i in range(4): check4(12, 16+4*i, 14, first=(i == 0))
    a("v_cmp_ne_u32 vcc, 0, v12")
    a(f"s_add_u32 s59, s59, 1\ns_cbranch_vccz L_ook")
    if not opt.forceslow:
        a(f"s_cmp_eq_u32 s59, {NFAST}\ns_cselect_b32 s95, s101, 0\ns_cselect_b32 s101, 0, s101\ns_add_u32 s36, s36, s95\ns_add_u32 s37, s37, s95")
    a(f"s_cmp_gt_u32 s59, {SPIN_MAX}\ns_cbranch_scc1 L_ook")
    ap_gather()
    a("s_branch L_apchk")
    a.label("L_ook")
    stamp(5)
    for i in range(4): mask4(16+4*i)
    for k in range(8): a(f"v_mul_f32 v{16+k}, v32, v{16+k}")
    for k in range(8): a(f"v_fmac_f32 v{16+k}, v36, v{24+k}")
    for r in (8, 4, 2, 1):
        for k in range(8): a(f"v_add_f32_dpp v{16+k}, v{16+k}, v{16+k} row_ror:{r} row_mask:0xf bank_mask:0xf")
    for k in range(4): a(f"v_cvt_pk_bf16_f32 v{24+k}, v{16+2*k}, v{17+2*k}")
    mfma_tile(96, 24, 128)
    a("s_cmp_eq_u32 s3, 0\ns_cbranch_scc1 L_o0")
    row_to_lds(0)
    stamp(6)
    a("s_branch L_end")
    a.label("L_o0")
    row_select()
    a(f"""s_cmp_lt_u32 s4, 4
    s_cselect_b32 s60, 32, 24
    s_cmp_lt_u32 s5, s60
    s_cselect_b32 s98, 1, 0
    v_mov_b32 v10, 0
    v_lshlrev_b32 v20, 4, v0
    s_mov_b32 s59, 0""")
    a.label("L_await_rows")
    a(f"""ds_read_b64 v[22:23], v10 offset:{L_FL+56}
    ds_read_b128 v[24:27], v20 offset:{L_OX}
    ds_read_b128 v[28:31], v20 offset:{L_OX+512}
    s_add_u32 s59, s59, 1
    s_waitcnt lgkmcnt(0)
    v_readfirstlane_b32 s60, v22
    v_readfirstlane_b32 s61, v23
    s_xor_b32 s96, s98, 1
    s_or_b32 s61, s61, s96
    s_and_b32 s60, s60, s61
    s_cmp_gt_u32 s59, {SPIN_MAX*16}
    s_cbranch_scc1 L_rows_x
    s_cmp_eq_u32 s60, 0
    s_cbranch_scc1 L_await_rows""")
    a.label("L_rows_x")
    for k in range(4): a(f"v_add_f32 v{16+k}, v{16+k}, v{24+k}")
    a("s_cmp_eq_u32 s98, 0\ns_cbranch_scc1 L_nodownrow")
    for k in range(4): a(f"v_add_f32 v{16+k}, v{16+k}, v{28+k}")
    a.label("L_nodownrow")
    tag4([16, 17, 18, 19])
    exec_set(-1, 0)
    a(f"buffer_store_dwordx4 v[16:19], v13, s[40:43], s39 offen {opt.opflag}")
    a("s_mov_b64 exec, -1")
    stamp(6)
    a("s_cmp_lt_u32 s2, 128\ns_cbranch_scc0 L_end")
    srd(44, 8, 1024)
    a(f"""s_lshl_b32 s60, s4, 4
    s_add_u32 s60, s60, s5
    s_lshl_b32 s61, s60, 3
    v_mov_b32 v13, s61
    buffer_load_dwordx2 v[28:29], v13, s[44:47], 0 offen
    s_lshl_b32 s61, s60, {10 if opt.opt_t else 4}
    s_add_u32 s61, s61, {WS_OP}
    v_lshlrev_b32 v12, {4 if opt.opt_t else 11}, v0
    s_mov_b32 s59, 0
    buffer_load_dwordx4 v[16:19], v12, s[40:43], s61 offen sc1""")
    a.label("L_fpoll")
    if opt.fsingle:
        a("s_waitcnt vmcnt(0)")
        check4(14, 16, 30, first=True)
        a(f"""v_cmp_ne_u32 vcc, 0, v14
        s_add_u32 s59, s59, 1
        s_cbranch_vccz L_fok
        s_cmp_gt_u32 s59, {SPIN_MAX}
        s_cbranch_scc1 L_fok""")
        if opt.fsleep: a(f"s_sleep {opt.fsleep}")
        a("buffer_load_dwordx4 v[16:19], v12, s[40:43], s61 offen sc1\ns_branch L_fpoll")
    else:
        if opt.fsleep: a(f"s_sleep {opt.fsleep}")
        a("buffer_load_dwordx4 v[20:23], v12, s[40:43], s61 offen sc1\ns_waitcnt vmcnt(1)")
        check4(14, 16, 30, first=True)
        a(f"""v_cmp_ne_u32 vcc, 0, v14
        s_add_u32 s59, s59, 1
        s_cbranch_vccz L_fok""")
        if opt.fsleep: a(f"s_sleep {opt.fsleep}")
        a("""buffer_load_dwordx4 v[16:19], v12, s[40:43], s61 offen sc1
        s_waitcnt vmcnt(1)""")
        check4(14, 20, 30, first=True)
        a(f"""v_cmp_ne_u32 vcc, 0, v14
        s_cbranch_vccz L_fok2
        s_cmp_gt_u32 s59, {SPIN_MAX}
        s_cbranch_scc0 L_fpoll""")
        a.label("L_fok2")
        a("s_waitcnt vmcnt(0)")
        for k in range(4): a(f"v_mov_b32 v{16+k}, v{20+k}")
    a.label("L_fok")
    stamp(7)
    mask4(16)
    for r in (8, 4, 2, 1):
        for k in range(4): a(f"v_add_f32_dpp v{16+k}, v{16+k}, v{16+k} row_ror:{r} row_mask:0xf bank_mask:0xf")
    for k in range(4): a(f"v_add_f32_dpp v{16+k}, v{16+k}, v{16+k} row_bcast:15 row_mask:0xa bank_mask:0xf")
    for k in range(4): a(f"v_add_f32_dpp v{16+k}, v{16+k}, v{16+k} row_bcast:31 row_mask:0xc bank_mask:0xf")
    a("""v_lshlrev_b32 v24, 16, v28
    v_and_b32 v25, 0xffff0000, v28
    v_lshlrev_b32 v26, 16, v29
    v_and_b32 v27, 0xffff0000, v29""")
    for k in range(4): a(f"v_add_f32 v{16+k}, v{16+k}, v{24+k}")
    a("v_cvt_pk_bf16_f32 v16, v16, v17\nv_cvt_pk_bf16_f32 v17, v18, v19")
    srd(44, 26, 1024)
    exec_set(0, "0x80000000")
    a("""buffer_store_dwordx2 v[16:17], v13, s[44:47], 0 offen
    s_cmp_eq_u32 s2, 0
    s_cbranch_scc0 L_noepoch
    v_mov_b32 v18, s7
    v_mov_b32 v19, 0""")
    a("buffer_store_dword v18, v19, s[40:43], 0 offen" + ("" if opt.eplain else " sc1"))
    a.label("L_noepoch")
    a("s_mov_b64 exec, -1")
    stamp(8)
    a.label("L_end")
    if opt.endwait: a("s_waitcnt vmcnt(0)")
    if opt.dbgstamps:
        a("""s_waitcnt lgkmcnt(0)
        s_cmp_eq_u32 s94, 2
        s_cbranch_scc0 L_exit
        s_and_b32 s96, s2, 0xfb
        s_cmp_eq_u32 s96, 0
        s_cbranch_scc0 L_exit
        s_lshl_b32 s96, s2, 3
        s_add_u32 s98, s28, s96
        s_addc_u32 s99, s29, 0
        s_mov_b64 exec, 1
        v_mov_b32 v4, 0""")
        for i in range(8):
            a(f"s_sub_u32 s96, s{64+2*(i+1)}, s64\nv_mov_b32 v2, s96\nglobal_store_dword v4, v2, s[98:99] offset:{4*i}\ns_nop 1")
        a("s_waitcnt vmcnt(0)\ns_branch L_exit")
    if opt.stamps and not opt.dbgstamps:
        a("""s_waitcnt lgkmcnt(0)
        s_lshl_b32 s96, s2, 4
        s_add_u32 s96, s96, s94
        s_lshl_b32 s96, s96, 7
        s_add_u32 s96, s96, 0x4000000
        s_add_u32 s98, s30, s96
        s_addc_u32 s99, s31, 0
        s_mov_b64 exec, 1
        v_mov_b32 v4, 0""")
        for i in range(NSTAMP):
            a(f"v_mov_b32 v2, s{64+2*i}\nv_mov_b32 v3, s{65+2*i}\nglobal_store_dwordx2 v4, v[2:3], s[98:99] offset:{8*i}\ns_nop 1")
        a("v_mov_b32 v2, 0x54414D50\nv_mov_b32 v3, 0x53\nglobal_store_dwordx2 v4, v[2:3], s[98:99] offset:120\ns_waitcnt vmcnt(0)")
    a.label("L_exit")
    a("s_endpgm")
    body = a.finish()
    hdr = f"""; Fused decode step: LayerNorm -> (GQA sliding-window attention + GEGLU FFN) -> residual sum.
; @launch grid=(256,1,1) block=(512,1,1) lds={LDS_BYTES}
.amdgcn_target "amdgcn-amd-amdhsa--gfx950"
.text
.globl {KNAME}
.p2align 8
.type {KNAME},@function
{KNAME}:
"""
    ftr = f""".section .rodata,"a"
.p2align 6
.amdhsa_kernel {KNAME}
  .amdhsa_next_free_vgpr 256
  .amdhsa_next_free_sgpr 102
  .amdhsa_accum_offset 256
  .amdhsa_group_segment_fixed_size 0
  .amdhsa_kernarg_size 96
  .amdhsa_user_sgpr_count 2
  .amdhsa_user_sgpr_kernarg_segment_ptr 1
  .amdhsa_system_sgpr_workgroup_id_x 1
  .amdhsa_float_denorm_mode_32 3
.end_amdhsa_kernel
"""
    return hdr + body + ftr, a.nnop

if __name__ == "__main__":
    import argparse
    ap = argparse.ArgumentParser()
    ap.add_argument("-o", default="out.s")
    ap.add_argument("--stamps", action="store_true")
    ap.add_argument("--nt", default="nt")
    ap.add_argument("--kv", type=int, default=3)
    ap.add_argument("--sleep", type=int, default=1)
    ap.add_argument("--nofast", action="store_true")
    ap.add_argument("--endwait", action="store_true")
    ap.add_argument("--opt_t", action="store_true")
    ap.add_argument("--dry", action="store_true")
    ap.add_argument("--nocpf", action="store_true")
    ap.add_argument("--v1", type=int, default=8)
    ap.add_argument("--fsleep", type=int, default=0)
    ap.add_argument("--fsingle", action="store_true")
    ap.add_argument("--noba", action="store_true")
    ap.add_argument("--fafter", action="store_true")
    ap.add_argument("--nowarm", action="store_true")
    ap.add_argument("--eplain", action="store_true")
    ap.add_argument("--opflag", default="sc1")
    ap.add_argument("--stouch", action="store_true")
    ap.add_argument("--dbgstamps", action="store_true")
    args = ap.parse_args()
    o = Opt(); o.stamps = args.stamps; o.nt = args.nt; o.kv = args.kv; o.sleep = args.sleep; o.forceslow = args.nofast; o.endwait = args.endwait; o.opt_t = args.opt_t; o.dry = args.dry; o.cpf = not args.nocpf; o.v1 = args.v1; o.fsleep = args.fsleep; o.fsingle = args.fsingle; o.ba = not args.noba; o.fafter = args.fafter; o.warm = not args.nowarm; o.eplain = args.eplain; o.opflag = args.opflag; o.stouch = args.stouch; o.dbgstamps = args.dbgstamps
    if o.dbgstamps: o.stamps = True
    text, nn = build(o)
    open(args.o, "w").write(text)
    print("wrote", args.o, "nops inserted:", nn, "lines:", text.count("\n"))
```

```python
import sys
from asmlib import Asm
KNAME = "parallel_sum__sliding_block_cached__glu_gated_geglu__decode_kernel"

WS_E  = 0
WS_QP = 0x10000
WS_GU = 0x20000
WS_XI = 0x38000
WS_ML = 0x30000
WS_AP = 0x40000
WS_OP = 0x180000
WS_SLOW = 0xC0000
WS_SIZE = 0x20000000
L_XNQ = 0
L_XNF = 1024
L_Q   = 2048
L_AO  = 4096
L_ST  = 12288
L_OX  = 12544
L_XND = 14336
L_FL  = 12416
LDS_BYTES = 16384
SPIN_MAX = 1 << 14
NFAST = 48
NSTAMP = 15

class Opt:
    stamps = False
    nt = "nt"
    kv = 2
    sleep = 1
    fast = True
    forceslow = False
    endwait = False
    opt_t = False
    dry = False
    cpf = True
    v1 = 8
    fsleep = 0
    fsingle = False
    ba = True
    fafter = True
    warm = True
    eplain = False
    opflag = 'sc1'
    stouch = False
    dbgstamps = False
    dbgcnt = False

def build(opt):
    a = Asm()
    NT = opt.nt
    def stamp(i):
        if opt.stamps: a(f"s_memrealtime s[{64+2*i}:{65+2*i}]")
    def count_stamp():
        if opt.stamps: a("s_mov_b32 s92, s59\ns_mov_b32 s93, 0")
    def srd(dst, ptr, size):
        a(f"s_mov_b32 s{dst}, s{ptr}\ns_and_b32 s{dst+1}, s{ptr+1}, 0xffff\ns_mov_b32 s{dst+2}, {size}\ns_mov_b32 s{dst+3}, 0x20000")
    def srd_c(dst, size):
        a(f"s_mov_b32 s{dst+2}, {size}\ns_mov_b32 s{dst+3}, 0x20000")
    def srd_p(dst, ptr):
        a(f"s_mov_b32 s{dst}, s{ptr}\ns_and_b32 s{dst+1}, s{ptr+1}, 0xffff")
    def exec_set(lo, hi):
        a(f"s_mov_b32 exec_lo, {lo}\ns_mov_b32 exec_hi, {hi}")
    def make_tag():
        a("""s_add_u32 s7, s6, 1
        s_mul_i32 s6, s7, 0x01010101
        s_xor_b32 s6, s6, 0x5c3a96f0
        s_and_b32 s56, s6, 0xffff
        s_and_b32 s57, s6, 0xffff0000
        v_mov_b32 v254, s6""")
    def tag4(regs):
        for k, r in enumerate(regs):
            a(f"v_perm_b32 v{r}, v{r}, v254, s{50+k}")
    def check4(acc, r, tmp, first=False):
        a(f"v_perm_b32 v{tmp}, v{r+1}, v{r}, s54")
        a(f"v_perm_b32 v{tmp+1}, v{r+3}, v{r+2}, s55")
        if first: a(f"v_xor_b32 v{acc}, s56, v{tmp}")
        else:     a(f"v_bitop3_b32 v{acc}, v{acc}, v{tmp}, s56 bitop3:0xf6")
        a(f"v_bitop3_b32 v{acc}, v{acc}, v{tmp+1}, s57 bitop3:0xf6")
    def fast_store(data, voff, soff):
        a(f"buffer_store_dwordx4 {data}, {voff}, s[40:43], {soff} offen")
    def slow_store(data, voff, soff, lo, hi):
        exec_set(lo, hi)
        a(f"buffer_store_dwordx4 {data}, {voff}, s[40:43], {soff} offen sc1")
        a("s_mov_b64 exec, -1")
    def slow_if_nofast(offs):
        if opt.forceslow:
            for o in offs: a(f"s_add_u32 {o}, {o}, {WS_SLOW}")
    def poll_tail(ok, again, offs, own=None, once=None):
        a(f"s_add_u32 s59, s59, 1\ns_cbranch_vccz {ok}")
        if own is not None:
            a(f"s_cmp_eq_u32 s59, {NFAST//2}\ns_cbranch_scc0 {again}_ns")
            slow_store(*own)
            a.label(f"{again}_ns")
        if offs and not opt.forceslow:
            if once:
                a(f"s_cmp_eq_u32 s59, {NFAST}\ns_cselect_b32 s95, {once}, 0\ns_cselect_b32 {once}, 0, {once}")
            else:
                a(f"s_cmp_eq_u32 s59, {NFAST}\ns_cselect_b32 s95, {WS_SLOW}, 0")
            for o in offs: a(f"s_add_u32 {o}, {o}, s95")
        a(f"s_cmp_gt_u32 s59, {SPIN_MAX}\ns_cbranch_scc1 {ok}")
        if opt.sleep: a(f"s_sleep {opt.sleep}")
        a(f"s_branch {again}")
    def lds_wait(label, off, nflags):
        a(f"v_mov_b32 v10, 0\ns_mov_b32 s59, 0")
        a.label(label)
        if nflags == 1:
            a(f"ds_read_b32 v12, v10 offset:{off}\ns_add_u32 s59, s59, 1\ns_waitcnt lgkmcnt(0)")
        else:
            a(f"""ds_read_b128 v[12:15], v10 offset:{off}
            s_add_u32 s59, s59, 1
            s_waitcnt lgkmcnt(0)
            v_and_b32 v12, v12, v13
            v_and_b32 v14, v14, v15
            v_and_b32 v12, v12, v14
            s_nop 0""")
        a(f"""v_readfirstlane_b32 s60, v12
        s_cmp_gt_u32 s59, {SPIN_MAX*16}
        s_cbranch_scc1 {label}_x
        s_cmp_eq_u32 s60, 0
        s_cbranch_scc1 {label}""")
        a.label(label + "_x")
    def mask4(r):
        for k in range(4): a(f"v_and_b32 v{r+k}, s58, v{r+k}")
    def wave_sum_to_sgpr(v, s):
        for r in (8, 4, 2, 1):
            a(f"v_add_f32_dpp v{v}, v{v}, v{v} row_ror:{r} row_mask:0xf bank_mask:0xf")
        a(f"v_add_f32_dpp v{v}, v{v}, v{v} row_bcast:15 row_mask:0xa bank_mask:0xf")
        a(f"v_add_f32_dpp v{v}, v{v}, v{v} row_bcast:31 row_mask:0xc bank_mask:0xf")
        a(f"v_readlane_b32 s{s}, v{v}, 63")
    def gemv_tile(R, A, acc, first, B0=160):
        def perms(e, B):
            w = e >> 1; sel = 49 if (e & 1) else 48
            for u in range(4):
                a(f"v_perm_b32 v{B+u}, v{R+(2*u+1)*4+w}, v{R+(2*u)*4+w}, s{sel}")
        perms(0, B0)
        for e in range(8):
            B = B0 + 4*(e & 1)
            if e < 7: perms(e+1, B0 + 4*((e+1) & 1))
            c = "0" if first else f"v[{acc+4*e}:{acc+4*e+3}]"
            a(f"v_mfma_f32_16x16x32_bf16 v[{acc+4*e}:{acc+4*e+3}], v[{A}:{A+3}], v[{B}:{B+3}], {c}")
    def transpose_pairs(R, D, total_after):
        for u in range(4):
            a(f"s_waitcnt vmcnt({6-2*u+total_after})")
            for e in range(8):
                w = e >> 1; sel = 49 if (e & 1) else 48
                a(f"v_perm_b32 v{D+4*e+u}, v{R+(2*u+1)*4+w}, v{R+(2*u)*4+w}, s{sel}")
    def mfma_tile(D, A, acc):
        for e in range(8):
            a(f"v_mfma_f32_16x16x32_bf16 v[{acc+4*e}:{acc+4*e+3}], v[{A}:{A+3}], v[{D+4*e}:{D+4*e+3}], 0")
    def publish_out():
        for k in range(4): a(f"v_cndmask_b32 v{16+k}, v{128+4*k}, v{128+4*(4+k)}, s[62:63]")
        tag4([16, 17, 18, 19])
        exec_set(-1, 0)
        a("buffer_store_dwordx4 v[16:19], v13, s[40:43], s39 offen sc1")
        a("s_mov_b64 exec, -1")
    def row_select():
        for k in range(4): a(f"v_cndmask_b32 v{16+k}, v{128+4*k}, v{128+4*(4+k)}, s[62:63]")
    def row_to_lds(slot):
        row_select()
        a(f"""v_lshlrev_b32 v20, 4, v0
        v_mov_b32 v21, 0
        v_mov_b32 v22, 1""")
        exec_set(-1, 0)
        a(f"""ds_write_b128 v20, v[16:19] offset:{L_OX + 512*slot}
        ds_write_b32 v21, v22 offset:{L_FL + 56 + 4*slot}
        s_mov_b64 exec, -1""")
    def out_addr_setup():
        a("v_and_b32 v12, 16, v0\nv_cmp_ne_u32 s[62:63], 0, v12")
        if opt.opt_t: a("v_lshlrev_b32 v13, 11, v3\nv_lshl_add_u32 v13, v2, 10, v13")
        else: a("v_lshlrev_b32 v13, 5, v3\nv_lshl_add_u32 v13, v2, 4, v13")

    a("s_cmp_ge_u32 s2, 256\ns_cbranch_scc1 L_exit")
    stamp(0)
    a("""s_load_dwordx16 s[8:23], s[0:1], 0
    s_load_dwordx8 s[24:31], s[0:1], 64
    v_lshrrev_b32 v1, 6, v0
    v_and_b32 v0, 63, v0
    v_readfirstlane_b32 s3, v1
    s_and_b32 s4, s2, 7
    s_lshr_b32 s5, s2, 3
    s_cmp_lg_u32 s3, 0""")
    if opt.stamps: a("s_mov_b32 s94, s3")
    a("s_cbranch_scc1 L_notq")

    def consts():
        a("""v_lshrrev_b32 v2, 4, v0
        v_and_b32 v3, 15, v0
        s_mov_b32 s48, 0x05040100
        s_mov_b32 s49, 0x07060302
        s_mov_b32 s50, 0x07060500
        s_mov_b32 s51, 0x07060501
        s_mov_b32 s52, 0x07060502
        s_mov_b32 s53, 0x07060503
        s_mov_b32 s54, 0x0c0c0400
        s_mov_b32 s55, 0x04000c0c
        s_mov_b32 s58, 0xffffff00""")
        if opt.stamps:
            for i in range(1, NSTAMP): a(f"s_mov_b64 s[{64+2*i}:{65+2*i}], 0")

    def load_epoch():
        a("s_load_dword s6, s[30:31], 0")
        srd(40, 30, WS_SIZE)

    def issue_w():
        for tile in range(2):
            for i in range(8):
                r = 64 + (tile*8 + i)*4
                a(f"buffer_load_dwordx4 v[{r}:{r+3}], v50, s[32:35], s36 offen {NT}")
                if tile == 0 and i == 7:
                    a("s_add_u32 s36, s36, s96")
                elif not (tile == 1 and i == 7):
                    a("s_add_u32 s36, s36, s37")
    def x_load():
        srd(44, 8, 1024)
        a("buffer_load_dwordx4 v[4:7], v8, s[44:47], 0 offen")
    def w_voff(stride):
        a(f"""v_and_b32 v50, 56, v0
        v_mul_u32_u24 v50, {stride}, v50
        v_and_b32 v10, 7, v0
        v_lshl_add_u32 v50, v10, 4, v50
        v_lshlrev_b32 v8, 4, v0""")
    def layernorm(lds_xn):
        for k in range(4):
            a(f"v_lshlrev_b32 v{16+2*k}, 16, v{4+k}\nv_and_b32 v{17+2*k}, 0xffff0000, v{4+k}")
        a("""v_add_f32 v24, v16, v17
        v_add_f32 v25, v18, v19
        v_add_f32 v26, v20, v21
        v_add_f32 v27, v22, v23
        v_add_f32 v24, v24, v25
        v_add_f32 v26, v26, v27
        v_add_f32 v24, v24, v26""")
        wave_sum_to_sgpr(24, 60)
        a("v_mov_b32 v25, 0x3b000000\nv_mul_f32 v25, s60, v25")
        for k in range(8): a(f"v_sub_f32 v{32+k}, v{16+k}, v25")
        a("v_mul_f32 v24, v32, v32")
        for k in range(1, 8): a(f"v_fmac_f32 v24, v{32+k}, v{32+k}")
        wave_sum_to_sgpr(24, 61)
        a("""v_mov_b32 v26, 0x3b000000
        v_mul_f32 v26, s61, v26
        v_cvt_pk_bf16_f32 v28, v25, v26
        v_lshlrev_b32 v29, 16, v28
        v_and_b32 v30, 0xffff0000, v28
        v_add_f32 v30, 0x3727c5ac, v30
        v_cvt_pk_bf16_f32 v30, v30, v30
        v_and_b32 v30, 0xffff0000, v30
        v_sqrt_f32 v30, v30
        v_cvt_pk_bf16_f32 v30, v30, v30
        v_and_b32 v30, 0xffff0000, v30
        v_rcp_f32 v30, v30""")
        for k in range(8): a(f"v_sub_f32 v{32+k}, v{16+k}, v29")
        for k in range(4): a(f"v_cvt_pk_bf16_f32 v{40+k}, v{32+2*k}, v{33+2*k}")
        for k in range(4):
            a(f"v_lshlrev_b32 v{32+2*k}, 16, v{40+k}\nv_and_b32 v{33+2*k}, 0xffff0000, v{40+k}")
        for k in range(8): a(f"v_mul_f32 v{32+k}, v{32+k}, v30")
        for k in range(4): a(f"v_cvt_pk_bf16_f32 v{40+k}, v{32+2*k}, v{33+2*k}")
        a(f"""v_add_u32 v8, s95, v8
        v_and_b32 v17, 1, v3
        v_lshlrev_b32 v17, 4, v17
        v_lshl_add_u32 v17, v2, 5, v17
        s_add_u32 s60, s38, s95
        ds_write_b128 v8, v[40:43]
        v_add_u32 v17, s60, v17
        ds_read_b128 v[8:11], v17
        ds_read_b128 v[12:15], v17 offset:128""")
    def slice_store_addr(xi=False):
        a("""v_and_b32 v16, 8, v0
        v_and_b32 v204, 7, v0
        v_lshlrev_b32 v204, 5, v204
        v_lshl_add_u32 v204, v16, 1, v204""")
        if xi:
            a(f"""s_lshl_b32 s60, s4, 9
            s_lshl_b32 s61, s5, 4
            s_add_u32 s60, s60, s61
            s_add_u32 s60, s60, {WS_XI}
            s_sub_u32 s60, s60, s39
            v_cmp_eq_u32 vcc, 16, v0
            v_mov_b32 v18, s60
            s_nop 0
            v_cndmask_b32 v204, v204, v18, vcc""")
    def pretouch(dst, voff, soff, lo, hi):
        exec_set(lo, hi)
        a(f"buffer_load_dwordx4 {dst}, {voff}, s[40:43], {soff} offen sc1")
        a("s_mov_b64 exec, -1")
    def slice_sums():
        a("v_and_b32 v16, 8, v0\nv_cmp_ne_u32 s[62:63], 0, v16")
        for k in range(4):
            a(f"v_cndmask_b32 v{20+k}, v{128+4*k}, v{128+4*(4+k)+1}, s[62:63]")
            a(f"v_cndmask_b32 v{24+k}, v{128+4*(4+k)}, v{128+4*k+1}, s[62:63]")
        for k in range(4):
            a(f"v_add_f32_dpp v{200+k}, v{24+k}, v{20+k} row_ror:8 row_mask:0xf bank_mask:0xf")
    def slice_publish(xi=False):
        if xi:
            a(f"""s_getreg_b32 s60, hwreg(HW_REG_XCC_ID)
            s_and_b32 s60, s60, 0xffff
            s_lshl_b32 s37, s60, 8
            v_cmp_eq_u32 vcc, 16, v0
            v_mov_b32 v16, s37
            s_nop 0""")
            for k in range(4): a(f"v_cndmask_b32 v{200+k}, v{200+k}, v16, vcc")
        tag4([200, 201, 202, 203])
        exec_set("0x1ffff" if xi else "0xffff", 0)
        fast_store("v[200:203]", "v204", "s39")
        a("s_mov_b64 exec, -1")
        a(f"s_add_u32 s38, s39, {WS_SLOW}")
    def core_block():
        xw_ = 1 if opt.warm else 0
        a.label("L_core")
        a(f"s_waitcnt vmcnt({16+xw_}) lgkmcnt(0)")
        stamp(10)
        make_tag()
        layernorm(None)
        stamp(11)
        a.label("L_core_g")
        a(f"s_waitcnt vmcnt({8+xw_}) lgkmcnt(0)")
        gemv_tile(64, 8, 128, True)
        a(f"s_waitcnt vmcnt({xw_})")
        gemv_tile(96, 12, 128, False)
        slice_sums()
        a("""s_cmp_eq_u32 s101, 0
        s_cbranch_scc1 L_roleQ3
        s_cmp_eq_u32 s101, 1
        s_cbranch_scc1 L_roleF3
        s_branch L_roleO2""")

    a.label("L_roleQ")
    a(f"""s_lshr_b32 s97, s5, 3
    s_lshl_b32 s36, s97, 20
    s_lshl_b32 s98, s4, 10
    s_add_u32 s36, s36, s98
    s_and_b32 s96, s5, 7
    s_lshl_b32 s98, s96, 7
    s_add_u32 s36, s36, s98
    s_movk_i32 s37, 8192
    v_and_b32 v50, 56, v0
    v_lshlrev_b32 v50, 13, v50
    v_and_b32 v10, 7, v0
    v_lshl_add_u32 v50, v10, 4, v50
    v_lshlrev_b32 v8, 4, v0
    s_movk_i32 s46, 1024
    s_mov_b32 s47, 0x20000
    s_mov_b32 s34, 4194304
    s_mov_b32 s35, s47
    s_mov_b32 s96, {57*8192}
    s_waitcnt lgkmcnt(0)""")
    srd_p(44, 8)
    a("buffer_load_dwordx4 v[4:7], v8, s[44:47], 0 offen")
    srd_p(32, 14)
    issue_w()
    a("s_barrier\ns_branch L_roleQ2")
    a.label("L_notq")
    a("s_cmp_lt_u32 s3, 4\ns_cbranch_scc1 L_fo")
    a(f"""s_sub_u32 s3, s3, 4
    s_lshl_b32 s96, s4, 24
    s_lshr_b32 s97, s5, 3
    s_lshl_b32 s97, s97, 18
    s_add_u32 s96, s96, s97
    s_and_b32 s97, s5, 7
    s_lshl_b32 s97, s97, 10
    s_add_u32 s96, s96, s97
    s_lshl_b32 s97, s3, 13
    s_add_u32 s96, s96, s97
    s_add_u32 s96, s96, {61440*256}
    s_add_u32 s97, s96, 131072
    v_and_b32 v8, 3, v0
    v_lshlrev_b32 v8, 15, v8
    v_bfe_u32 v9, v0, 2, 2
    v_lshl_add_u32 v8, v9, 8, v8
    v_lshrrev_b32 v2, 4, v0
    v_lshl_add_u32 v8, v2, 4, v8
    s_mov_b32 s34, 134217728
    s_mov_b32 s35, 0x20000
    s_waitcnt lgkmcnt(0)""")
    srd_p(32, 10)
    a("s_barrier")
    for T in range(2):
        for t in range(4):
            r = 64 + (T*4 + t)*4
            a(f"buffer_load_dwordx4 v[{r}:{r+3}], v8, s[32:35], s{96+T} offen offset:{t*64} {NT}")
    a("s_branch L_roleA")
    a.label("L_fo")
    a("s_barrier")
    a("s_cmp_lt_u32 s3, 2\ns_cbranch_scc1 L_roleF")
    if opt.dry:
        a(f"""s_mov_b32 s101, 2
        s_movk_i32 s95, {L_XND}
        s_mov_b32 s38, 0
        v_lshlrev_b32 v8, 4, v0
        v_lshrrev_b32 v2, 4, v0
        v_and_b32 v3, 15, v0
        s_cmp_eq_u32 s3, 3
        s_cbranch_scc1 L_core_g""")
        core_block()
    else:
        a("s_branch L_roleO2")
        core_block()
    a.label("L_roleQ2")
    a("s_setprio 3")
    a(f"""s_and_b32 s96, s5, 7
    s_lshl_b32 s38, s97, 8
    s_lshl_b32 s39, s4, 13
    s_lshl_b32 s98, s97, 11
    s_add_u32 s39, s39, s98
    s_lshl_b32 s98, s96, 8
    s_add_u32 s39, s39, s98
    s_add_u32 s39, s39, {WS_QP}""")
    consts()
    load_epoch()
    slice_store_addr(xi=True)
    if opt.warm: pretouch("v[208:211]", "v204", "s39", "0x1ffff", 0)
    a(f"v_mov_b32 v16, 0\nv_lshlrev_b32 v17, 2, v0")
    exec_set(-1, 0)
    a(f"ds_write_b32 v17, v16 offset:{L_FL}\ns_mov_b64 exec, -1")
    stamp(1)
    xw = 1 if opt.warm else 0
    a(f"s_mov_b32 s101, 0\ns_mov_b32 s95, {L_XNQ}\ns_branch L_core")
    a.label("L_roleQ3")
    slice_publish(xi=True)
    stamp(4)
    a("s_barrier")
    if opt.fafter: a("s_barrier")
    a(f"""s_lshl_b32 s98, s4, 9
    s_add_u32 s98, s98, {WS_XI}
    v_and_b32 v9, 31, v0
    v_lshlrev_b32 v9, 4, v9
    s_mov_b32 s59, 0""")
    slow_if_nofast(["s98"])
    a("s_barrier")
    stamp(5)
    a("buffer_load_dwordx4 v[96:99], v9, s[40:43], s98 offen sc1")
    a("s_barrier")
    a("s_branch L_qchk")
    a.label("L_qretry")
    a("buffer_load_dwordx4 v[96:99], v9, s[40:43], s98 offen sc1")
    a.label("L_qchk")
    a("s_waitcnt vmcnt(0)")
    check4(16, 96, 18, first=True)
    a("v_cmp_ne_u32 vcc, 0, v16")
    poll_tail("L_qok", "L_qretry", ["s98"], own=("v[200:203]", "v204", "s38", "0x1ffff", 0))
    a.label("L_qok")
    stamp(6)
    count_stamp()
    a(f"""v_and_b32 v96, s58, v96
    v_cmp_ne_u32 vcc, s37, v96
    v_mov_b32 v19, 0
    s_nop 2
    s_cmp_lg_u64 vcc, 0
    s_cselect_b32 s60, 3, 1
    s_cmp_ge_u32 s59, {NFAST//2}
    s_cselect_b32 s60, 3, s60
    v_mov_b32 v18, s60
    s_nop 0
    ds_write_b32 v19, v18 offset:{L_FL}
    s_cmp_eq_u32 s60, 1
    s_cbranch_scc1 L_qend""")
    slow_store("v[200:203]", "v204", "s38", "0x1ffff", 0)
    a.label("L_qend")
    stamp(7)
    a("s_branch L_end")

    a.label("L_roleF")
    consts()
    a(f"""s_lshl_b32 s96, s4, 2
    s_mul_i32 s97, s4, 3
    s_add_u32 s97, s97, 4
    s_cmp_lt_u32 s4, 4
    s_cselect_b32 s96, s96, s97
    s_cselect_b32 s97, 32, 24
    s_cmp_lt_u32 s5, s97
    s_cselect_b32 s100, 1, 0
    s_lshr_b32 s97, s5, 3
    s_add_u32 s98, s96, s97
    s_lshr_b32 s99, s5, 1
    s_and_b32 s99, s99, 3
    s_mul_i32 s36, s99, {128*3584}
    s_lshl_b32 s98, s98, 7
    s_add_u32 s36, s36, s98
    s_mov_b32 s37, 3584
    s_lshl_b32 s38, s99, 8
    s_lshl_b32 s39, s4, 13
    s_and_b32 s101, s5, 1
    s_lshl_b32 s98, s101, 12
    s_add_u32 s39, s39, s98
    s_lshl_b32 s98, s99, 10
    s_add_u32 s39, s39, s98
    s_lshl_b32 s98, s97, 8
    s_add_u32 s39, s39, s98
    s_add_u32 s39, s39, {WS_GU}
    s_lshl_b32 s96, s96, 16
    s_lshr_b32 s97, s5, 2
    s_lshl_b32 s98, s97, 15
    s_add_u32 s98, s98, s96
    s_and_b32 s97, s5, 3
    s_lshl_b32 s99, s97, 8
    s_add_u32 s98, s98, s99
    s_add_u32 s99, s98, 4096
    s_mov_b32 s96, {57*3584}""")
    w_voff(3584)
    a("s_setprio 2")
    a("s_waitcnt lgkmcnt(0)")
    x_load()
    a("""s_cmp_eq_u32 s101, 0
    s_cselect_b32 s60, s20, s22
    s_cselect_b32 s61, s21, s23""")
    srd(32, 60, 1835008)
    a("s_cmp_eq_u32 s100, 0\ns_cbranch_scc1 L_fskip")
    if opt.fafter:
        load_epoch()
        slice_store_addr()
        a("s_setprio 3")
        a("s_barrier")
        issue_w()
        a("s_barrier")
        if opt.warm: pretouch("v[208:211]", "v204", "s39", "0xffff", 0)
    else:
        issue_w()
        load_epoch()
        slice_store_addr()
        if opt.warm: pretouch("v[208:211]", "v204", "s39", "0xffff", 0)
        a("s_barrier")
    a(f"""s_mov_b32 s101, 1
    s_movk_i32 s95, {L_XNF}
    s_branch L_core""")
    a.label("L_roleF3")
    slice_publish()
    srd(44, 24, 1835008)
    a("""v_lshlrev_b32 v51, 13, v2
    v_lshl_add_u32 v51, v3, 4, v51""")
    stamp(2)
    a("s_setprio 0")
    a("s_barrier\ns_barrier")
    for i in range(8):
        a(f"buffer_load_dwordx4 v[{168+4*i}:{171+4*i}], v51, s[44:47], s{98+(i>>2)} offen offset:{(i&3)*1024} {NT}")
    stamp(3)
    a(f"""v_lshrrev_b32 v56, 3, v3
    v_lshlrev_b32 v56, 12, v56
    v_and_b32 v57, 3, v3
    v_lshl_add_u32 v56, v57, 10, v56
    v_and_b32 v57, 4, v3
    v_lshl_add_u32 v56, v57, 2, v56
    v_lshl_add_u32 v56, v2, 5, v56
    s_lshl_b32 s98, s4, 13
    s_lshr_b32 s99, s5, 2
    s_lshl_b32 s96, s99, 7
    s_add_u32 s98, s98, s96
    s_add_u32 s98, s98, {WS_GU}
    s_mov_b32 s59, 0""")
    slow_if_nofast(["s98"])
    out_addr_setup()
    for u in range(4):
        a(f"s_waitcnt vmcnt({6-2*u + (1 if u else 0)})")
        for e in range(8):
            w = e >> 1; sel = 49 if (e & 1) else 48
            a(f"v_perm_b32 v{64+4*e+u}, v{168+(2*u+1)*4+w}, v{168+(2*u)*4+w}, s{sel}")
        if u == 0: a("buffer_load_dwordx4 v[32:35], v56, s[40:43], s98 offen sc1")
    stamp(4)
    a.label("L_gpoll")
    a("buffer_load_dwordx4 v[36:39], v56, s[40:43], s98 offen sc1\ns_waitcnt vmcnt(1)")
    check4(12, 32, 14, first=True)
    a("v_cmp_ne_u32 vcc, 0, v12\ns_cbranch_vccz L_gokA")
    a("buffer_load_dwordx4 v[32:35], v56, s[40:43], s98 offen sc1\ns_waitcnt vmcnt(1)")
    check4(12, 36, 14, first=True)
    a("v_cmp_ne_u32 vcc, 0, v12")
    poll_tail("L_gokB", "L_gpoll", ["s98"], own=("v[200:203]", "v204", "s38", "0xffff", 0))
    a.label("L_gokB")
    for k in range(4): a(f"v_and_b32 v{40+k}, s58, v{36+k}")
    a("s_branch L_gok")
    a.label("L_gokA")
    for k in range(4): a(f"v_and_b32 v{40+k}, s58, v{32+k}")
    a.label("L_gok")
    stamp(5)
    count_stamp()
    for q in ("[1,0,3,2]", "[2,3,0,1]"):
        for k in range(4): a(f"v_add_f32_dpp v{40+k}, v{40+k}, v{40+k} quad_perm:{q} row_mask:0xf bank_mask:0xf")
    a("v_cvt_pk_bf16_f32 v44, v40, v41\nv_cvt_pk_bf16_f32 v45, v42, v43")
    a("v_lshlrev_b32 v40, 16, v44\nv_and_b32 v41, 0xffff0000, v44\nv_lshlrev_b32 v42, 16, v45\nv_and_b32 v43, 0xffff0000, v45")
    a("v_and_b32 v12, 8, v0\nv_cmp_ne_u32 vcc, 0, v12")
    for k in range(4): a(f"v_mov_b32_dpp v{44+k}, v{40+k} row_ror:8 row_mask:0xf bank_mask:0xf")
    for k in range(4):
        a(f"v_cndmask_b32 v{48+k}, v{40+k}, v{44+k}, vcc")
        a(f"v_cndmask_b32 v{52+k}, v{44+k}, v{40+k}, vcc")
    a("s_mov_b32 s60, 0x3d372713\ns_mov_b32 s61, 0xc0135761")
    for k in range(4): a(f"v_mul_f32 v{40+k}, v{48+k}, v{48+k}")
    for k in range(4): a(f"v_fma_f32 v{40+k}, v{40+k}, s60, 1.0")
    for k in range(4): a(f"v_mul_f32 v{40+k}, v{40+k}, v{48+k}")
    for k in range(4): a(f"v_mul_f32 v{40+k}, s61, v{40+k}")
    for k in range(4): a(f"v_exp_f32 v{40+k}, v{40+k}")
    for k in range(4): a(f"v_add_f32 v{40+k}, 1.0, v{40+k}")
    for k in range(4): a(f"v_rcp_f32 v{40+k}, v{40+k}")
    for k in range(4): a(f"v_mul_f32 v{40+k}, v{40+k}, v{48+k}")
    a("v_cvt_pk_bf16_f32 v44, v40, v41\nv_cvt_pk_bf16_f32 v45, v42, v43")
    a("v_lshlrev_b32 v40, 16, v44\nv_and_b32 v41, 0xffff0000, v44\nv_lshlrev_b32 v42, 16, v45\nv_and_b32 v43, 0xffff0000, v45")
    for k in range(4): a(f"v_mul_f32 v{40+k}, v{40+k}, v{52+k}")
    a("v_cvt_pk_bf16_f32 v44, v40, v41\nv_cvt_pk_bf16_f32 v45, v42, v43")
    a("v_and_b32 v12, 4, v0\nv_cmp_ne_u32 vcc, 0, v12")
    a("v_mov_b32_dpp v46, v44 row_ror:4 row_mask:0xf bank_mask:0xf\nv_mov_b32_dpp v47, v45 row_ror:4 row_mask:0xf bank_mask:0xf")
    a("""v_cndmask_b32 v24, v44, v46, vcc
    v_cndmask_b32 v25, v45, v47, vcc
    v_cndmask_b32 v26, v46, v44, vcc
    v_cndmask_b32 v27, v47, v45, vcc""")
    mfma_tile(64, 24, 128)
    row_to_lds(1)
    stamp(6)
    lds_wait("L_fawait_col", L_FL, 1)
    a("s_cmp_eq_u32 s60, 1\ns_cbranch_scc1 L_end")
    slow_store("v[200:203]", "v204", "s38", "0xffff", 0)
    a("s_branch L_end")
    a.label("L_fskip")
    if opt.fafter: a("s_barrier")
    a("s_barrier\ns_barrier\ns_barrier\ns_branch L_end")

    a.label("L_roleA")
    a("s_setprio 2")
    consts()
    a("""v_lshlrev_b32 v9, 8, v2
    v_lshl_add_u32 v9, v3, 4, v9""")
    srd(36, 12, 134217728)
    load_epoch()
    stamp(1)
    a("s_barrier")
    if opt.fafter: a("s_barrier")
    def vload(i):
        r = 96 + i*4
        a(f"buffer_load_dwordx4 v[{r}:{r+3}], v9, s[36:39], s99 offen {NT}")
        if i < 7: a("s_add_u32 s99, s99, 32768")
    a("s_mov_b32 s99, s96")
    for i in range(opt.v1): vload(i)
    a("s_mov_b64 s[44:45], s[36:37]\ns_mov_b64 s[46:47], s[38:39]")
    a("s_waitcnt lgkmcnt(0)")
    make_tag()
    a(f"""s_lshl_b32 s36, s4, 16
    s_lshl_b32 s37, s5, 4
    s_add_u32 s36, s36, s37
    s_lshl_b32 s37, s3, 14
    s_add_u32 s36, s36, s37
    s_add_u32 s36, s36, {WS_AP}
    v_lshlrev_b32 v52, 9, v0
    v_add_u32 v52, s36, v52
    s_lshl_b32 s36, s4, 2
    s_add_u32 s36, s36, s3
    s_lshl_b32 s36, s36, 9
    s_lshl_b32 s37, s5, 4
    s_add_u32 s36, s36, s37
    s_add_u32 s36, s36, {WS_ML}
    v_mov_b32 v53, s36
    v_cmp_eq_u32 s[62:63], 32, v0
    s_lshl_b32 s36, s3, 11
    v_lshlrev_b32 v54, 9, v2
    v_lshl_add_u32 v54, v3, 5, v54
    v_add_u32 v54, s36, v54
    s_lshl_b32 s36, s3, 3
    v_lshrrev_b32 v55, 2, v3
    v_lshlrev_b32 v55, 5, v55
    v_add_u32 v55, s36, v55
    v_cndmask_b32 v52, v52, v53, s[62:63]
    s_lshl_b32 s36, s3, 9
    v_and_b32 v56, 31, v0
    v_lshlrev_b32 v56, 4, v56
    v_add_u32 v56, s36, v56
    s_lshl_b32 s36, s3, 5
    v_mov_b32 v57, s36
    s_lshl_b32 s36, s3, 2
    v_mov_b32 v58, s36
    v_mov_b32 v59, 1
    v_lshrrev_b32 v60, 2, v3
    v_lshlrev_b32 v60, 8, v60
    v_lshl_add_u32 v60, v2, 4, v60""")
    a(f"""s_lshl_b32 s96, s4, 13
    s_lshl_b32 s97, s3, 9
    s_add_u32 s96, s96, s97
    s_add_u32 s96, s96, {WS_QP}
    v_lshrrev_b32 v61, 5, v0
    v_lshlrev_b32 v61, 11, v61
    v_and_b32 v62, 31, v0
    v_lshl_add_u32 v61, v62, 4, v61
    s_lshl_b32 s97, s3, 8
    v_lshlrev_b32 v62, 3, v62
    v_add_u32 v62, s97, v62
    s_add_u32 s97, s96, 4096
    s_mov_b32 s59, 0
    s_mov_b32 s101, {WS_SLOW}""")
    slow_if_nofast(["s96", "s97"])
    stamp(2)
    a(f"s_waitcnt vmcnt({opt.v1-opt.kv})")
    stamp(3)
    a("s_barrier")
    def a_qgather():
        a("buffer_load_dwordx4 v[16:19], v61, s[40:43], s96 offen sc1\nbuffer_load_dwordx4 v[20:23], v61, s[40:43], s97 offen sc1")
    a_qgather()
    for i in range(opt.v1, 8):
        r = 96 + i*4
        a(f"buffer_load_dwordx4 v[{r}:{r+3}], v9, s[44:47], s99 offen {NT}")
        if i < 7: a("s_add_u32 s99, s99, 32768")
    a("s_barrier")
    if opt.warm: pretouch("v[200:203]", "v52", "0", -1, 1)
    xa = 1 if opt.warm else 0
    nlate = 8 - opt.v1
    def vperms(u):
        for e in range(8):
            w = e >> 1; sel = 49 if (e & 1) else 48
            a(f"v_perm_b32 v{160+4*e+u}, v{96+(2*u+1)*4+w}, v{96+(2*u)*4+w}, s{sel}")
    for u in range(4):
        if 2*(u+1) <= opt.v1:
            a(f"s_waitcnt vmcnt({opt.v1 - 2*(u+1) + 2 + nlate + xa})")
            vperms(u)
    if nlate == 0: stamp(9)
    a(f"s_waitcnt vmcnt({xa + nlate})\ns_branch L_aqchk")
    a.label("L_aqretry")
    a_qgather()
    a("s_waitcnt vmcnt(0)")
    a.label("L_aqchk")
    check4(12, 16, 14, first=True)
    check4(12, 20, 14)
    a("v_cmp_ne_u32 vcc, 0, v12")
    poll_tail("L_aqok", "L_aqretry", ["s96", "s97"], once="s101")
    a.label("L_aqok")
    stamp(8)
    mask4(16); mask4(20)
    for k in range(4): a(f"v_add_f32 v{16+k}, v{16+k}, v{20+k}")
    for k in range(4): a(f"v_mov_b32 v{20+k}, v{16+k}")
    for k in range(4): a(f"v_permlane32_swap_b32 v{16+k}, v{20+k}")
    for k in range(4): a(f"v_add_f32 v{16+k}, v{16+k}, v{20+k}")
    a(f"""v_cvt_pk_bf16_f32 v20, v16, v17
    v_cvt_pk_bf16_f32 v21, v18, v19
    ds_write_b64 v62, v[20:21] offset:{L_Q}""")
    exec_set(1, 0)
    a(f"ds_write_b32 v58, v59 offset:{L_FL+64}\ns_mov_b64 exec, -1")
    a("v_mov_b32 v10, 0\ns_mov_b32 s59, 0")
    a.label("L_await_q")
    a(f"ds_read_b128 v[12:15], v10 offset:{L_FL+64}")
    for t in range(4):
        a(f"ds_read_b128 v[{16+4*t}:{19+4*t}], v60 offset:{L_Q + t*64}")
    a(f"""s_add_u32 s59, s59, 1
    s_waitcnt lgkmcnt(0)
    v_and_b32 v12, v12, v13
    v_and_b32 v14, v14, v15
    v_and_b32 v12, v12, v14
    s_nop 0
    v_readfirstlane_b32 s60, v12
    s_cmp_gt_u32 s59, {SPIN_MAX*16}
    s_cbranch_scc1 L_await_q_x
    s_cmp_eq_u32 s60, 0
    s_cbranch_scc1 L_await_q""")
    a.label("L_await_q_x")
    stamp(4)
    for t in range(4):
        for T in range(2):
            c = "0" if t == 0 else f"v[{32+4*T}:{35+4*T}]"
            a(f"v_mfma_f32_16x16x32_bf16 v[{32+4*T}:{35+4*T}], v[{64+(T*4+t)*4}:{67+(T*4+t)*4}], v[{16+4*t}:{19+4*t}], {c}")
    a("s_mov_b32 s60, 0x3db504f3")
    for k in range(4): a(f"v_cvt_pk_bf16_f32 v{40+k}, v{32+2*k}, v{33+2*k}")
    for k in range(4): a(f"v_lshlrev_b32 v{32+2*k}, 16, v{40+k}\nv_and_b32 v{33+2*k}, 0xffff0000, v{40+k}")
    for k in range(8): a(f"v_mul_f32 v{32+k}, s60, v{32+k}")
    for k in range(4): a(f"v_cvt_pk_bf16_f32 v{40+k}, v{32+2*k}, v{33+2*k}")
    for k in range(4): a(f"v_lshlrev_b32 v{32+2*k}, 16, v{40+k}\nv_and_b32 v{33+2*k}, 0xffff0000, v{40+k}")
    a("""v_max3_f32 v44, v32, v33, v34
    v_max3_f32 v45, v35, v36, v37
    v_max3_f32 v44, v44, v38, v39
    v_max_f32 v44, v44, v45
    v_mov_b32 v45, v44
    v_permlane16_swap_b32 v44, v45
    v_max_f32 v44, v44, v45
    v_mov_b32 v45, v44
    v_permlane32_swap_b32 v44, v45
    v_max_f32 v44, v44, v45
    s_mov_b32 s60, 0x3fb8aa3b
    v_mul_f32 v46, s60, v44""")
    for k in range(8): a(f"v_fma_f32 v{32+k}, v{32+k}, s60, -v46")
    for k in range(8): a(f"v_exp_f32 v{32+k}, v{32+k}")
    for k in range(4): a(f"v_cvt_pk_bf16_f32 v{40+k}, v{32+2*k}, v{33+2*k}")
    if 8 - opt.v1:
        for u in range(4):
            if 2*(u+1) > opt.v1:
                a(f"s_waitcnt vmcnt({8 - 2*(u+1) + xa})")
                vperms(u)
        stamp(9)
    mfma_tile(160, 40, 128)
    a("""v_add_f32 v45, v32, v33
    v_add_f32 v46, v34, v35
    v_add_f32 v47, v36, v37
    v_add_f32 v48, v38, v39
    v_add_f32 v45, v45, v46
    v_add_f32 v47, v47, v48
    v_add_f32 v45, v45, v47
    v_mov_b32 v46, v45
    v_permlane16_swap_b32 v45, v46
    v_add_f32 v45, v45, v46
    v_mov_b32 v46, v45
    v_permlane32_swap_b32 v45, v46
    v_add_f32 v45, v45, v46""")
    stamp(5)
    for e in range(8): a(f"v_mov_b32 v{16+e}, v{128+4*e}")
    a(f"""ds_write_b128 v54, v[16:19] offset:{L_AO}
    ds_write_b128 v54, v[20:23] offset:{L_AO+16}""")
    exec_set("0x1111", 0)
    a(f"""ds_write_b64 v55, v[44:45] offset:{L_ST}
    s_mov_b64 exec, 1
    ds_write_b32 v58, v59 offset:{L_FL+16}
    s_mov_b64 exec, -1""")
    a("v_mov_b32 v10, 0\ns_mov_b32 s59, 0\nv_mov_b32 v42, 0")
    a.label("L_await_a")
    a(f"ds_read_b128 v[12:15], v10 offset:{L_FL+16}")
    for w in range(4): a(f"ds_read_b128 v[{16+4*w}:{19+4*w}], v56 offset:{L_AO + w*2048}")
    a(f"""ds_read_b128 v[32:35], v57 offset:{L_ST}
    ds_read_b128 v[36:39], v57 offset:{L_ST+16}
    s_add_u32 s59, s59, 1
    s_waitcnt lgkmcnt(0)
    v_and_b32 v12, v12, v13
    v_and_b32 v14, v14, v15
    v_and_b32 v12, v12, v14
    s_nop 0
    v_readfirstlane_b32 s60, v12
    s_cmp_gt_u32 s59, {SPIN_MAX*16}
    s_cbranch_scc1 L_await_a_x
    s_cmp_eq_u32 s60, 0
    s_cbranch_scc1 L_await_a""")
    a.label("L_await_a_x")
    stamp(6)
    a("""s_mov_b32 s60, 0x3fb8aa3b
    v_max3_f32 v40, v32, v34, v36
    v_max_f32 v40, v40, v38
    v_sub_f32 v32, v32, v40
    v_sub_f32 v34, v34, v40
    v_sub_f32 v36, v36, v40
    v_sub_f32 v38, v38, v40
    v_mul_f32 v32, s60, v32
    v_mul_f32 v34, s60, v34
    v_mul_f32 v36, s60, v36
    v_mul_f32 v38, s60, v38
    v_exp_f32 v32, v32
    v_exp_f32 v34, v34
    v_exp_f32 v36, v36
    v_exp_f32 v38, v38""")
    for k in range(4): a(f"v_mul_f32 v{44+k}, v32, v{16+k}")
    a("v_mul_f32 v41, v32, v33")
    for w, al in ((1, 34), (2, 36), (3, 38)):
        for k in range(4): a(f"v_fmac_f32 v{44+k}, v{al}, v{16+4*w+k}")
        a(f"v_fmac_f32 v41, v{al}, v{al+1}")
    a(f"""v_cndmask_b32 v44, v44, v40, s[62:63]
    v_cndmask_b32 v45, v45, v41, s[62:63]
    v_cndmask_b32 v46, v46, v42, s[62:63]
    v_cndmask_b32 v47, v47, v42, s[62:63]""")
    tag4([44, 45, 46, 47])
    exec_set(-1, 1)
    fast_store("v[44:47]", "v52", "0")
    a(f"""s_mov_b64 exec, 1
    ds_write_b32 v58, v59 offset:{L_FL+32}
    s_mov_b64 exec, -1""")
    stamp(7)
    lds_wait("L_await_col", L_FL, 1)
    a(f"s_cmp_eq_u32 s60, 1\ns_cbranch_scc1 L_end\ns_mov_b32 s60, {WS_SLOW}")
    slow_store("v[44:47]", "v52", "s60", -1, 1)
    a("s_branch L_end")

    a.label("L_roleO2")
    consts()
    a(f"""s_sub_u32 s3, s3, 2
    s_lshr_b32 s96, s5, 2
    s_and_b32 s97, s5, 3
    s_lshl_b32 s98, s4, 19
    s_lshl_b32 s99, s96, 16
    s_add_u32 s98, s98, s99
    s_lshl_b32 s99, s3, 15
    s_add_u32 s98, s98, s99
    s_lshl_b32 s99, s97, 8
    s_add_u32 s98, s98, s99
    s_add_u32 s99, s98, 4096
    v_lshlrev_b32 v8, 13, v2
    v_lshl_add_u32 v8, v3, 4, v8
    s_lshl_b32 s100, s4, 3
    s_add_u32 s100, s100, s96
    s_waitcnt lgkmcnt(0)""")
    load_epoch()
    if opt.stouch:
        a(f"""s_load_dword s59, s[26:27], 0
        s_add_u32 s60, s16, s98
        s_addc_u32 s61, s17, 0
        s_load_dword s59, s[60:61], 0
        s_lshl_b32 s60, s4, 24
        s_add_u32 s60, s60, {61440*256}
        s_add_u32 s60, s12, s60
        s_addc_u32 s61, s13, 0
        s_load_dword s59, s[60:61], 0
        s_load_dword s59, s[20:21], 0
        s_load_dword s59, s[22:23], 0
        s_load_dword s59, s[24:25], 0
        s_add_u32 s60, s20, 1048576
        s_addc_u32 s61, s21, 0
        s_load_dword s59, s[60:61], 0
        s_add_u32 s60, s22, 1048576
        s_addc_u32 s61, s23, 0
        s_load_dword s59, s[60:61], 0
        s_add_u32 s60, s24, 1048576
        s_addc_u32 s61, s25, 0
        s_load_dword s59, s[60:61], 0
        s_waitcnt lgkmcnt(0)""")
    srd(32, 16, 4194304)
    a(f"""s_lshl_b32 s60, s4, 16
    s_lshr_b32 s61, s96, 1
    s_lshl_b32 s101, s61, 14
    s_add_u32 s60, s60, s101
    s_and_b32 s101, s96, 1
    s_lshl_b32 s101, s101, 13
    s_add_u32 s60, s60, s101
    s_lshl_b32 s101, s3, 12
    s_add_u32 s60, s60, s101
    s_add_u32 s36, s60, {WS_AP}
    s_mov_b32 s37, s36
    v_lshlrev_b32 v9, 10, v2
    v_lshl_add_u32 v9, v3, 4, v9
    s_lshl_b32 s38, s4, 2
    s_add_u32 s38, s38, s61
    s_lshl_b32 s38, s38, 9
    s_add_u32 s38, s38, {WS_ML}
    v_and_b32 v11, 31, v0
    v_lshlrev_b32 v11, 4, v11
    """)
    if opt.opt_t:
        a(f"""s_lshl_b32 s39, s100, 4
        s_lshl_b32 s61, s97, 15
        s_add_u32 s39, s39, s61
        s_add_u32 s39, s39, {WS_OP}""")
    else:
        a(f"""s_lshl_b32 s39, s100, 11
        s_lshl_b32 s61, s97, 9
        s_add_u32 s39, s39, s61
        s_add_u32 s39, s39, {WS_OP}""")
    slow_if_nofast(["s36", "s37", "s38"])
    a("s_waitcnt lgkmcnt(0)")
    make_tag()
    stamp(1)
    if opt.fafter: a("s_barrier")
    a("s_barrier\ns_barrier\ns_barrier")
    for i in range(8):
        a(f"buffer_load_dwordx4 v[{64+4*i}:{67+4*i}], v8, s[32:35], s{98+(i>>2)} offen offset:{(i&3)*1024} {NT}")
    if opt.warm:
        a(f"""s_lshl_b32 s60, s4, 4
        s_and_b32 s61, s5, 15
        s_add_u32 s60, s60, s61
        s_lshl_b32 s60, s60, {10 if opt.opt_t else 4}
        s_add_u32 s60, s60, {WS_OP}
        v_lshlrev_b32 v210, {4 if opt.opt_t else 11}, v0
        s_cmp_lt_u32 s2, 128
        s_cselect_b32 s61, -1, 1
        s_cmp_eq_u32 s3, 0
        s_cselect_b32 s61, s61, 1
        s_mov_b32 exec_lo, s61
        s_mov_b32 exec_hi, s61
        buffer_load_dword v212, v210, s[40:43], s60 offen sc1
        s_mov_b64 exec, -1""")
    stamp(2)
    transpose_pairs(64, 96, 1 if opt.warm else 0)
    stamp(3)
    lds_wait("L_await_pub", L_FL+32, 4)
    out_addr_setup()
    a(f"s_mov_b32 s59, 0\ns_mov_b32 s101, {WS_SLOW}")
    stamp(4)
    a.label("L_mlpoll")
    a("buffer_load_dwordx4 v[32:35], v11, s[40:43], s38 offen sc1\ns_waitcnt vmcnt(0)")
    check4(12, 32, 14, first=True)
    a("v_cmp_ne_u32 vcc, 0, v12")
    poll_tail("L_mlok", "L_mlpoll", ["s36", "s37", "s38"], once="s101")
    a.label("L_mlok")
    stamp(9)
    count_stamp()
    def ap_gather():
        a("""buffer_load_dwordx4 v[16:19], v9, s[40:43], s36 offen sc1
        buffer_load_dwordx4 v[20:23], v9, s[40:43], s36 offen offset:512 sc1
        buffer_load_dwordx4 v[24:27], v9, s[40:43], s36 offen offset:256 sc1
        buffer_load_dwordx4 v[28:31], v9, s[40:43], s36 offen offset:768 sc1""")
    ap_gather()
    a("v_and_b32 v32, s58, v32\nv_and_b32 v33, s58, v33\nv_mov_b32 v44, v32")
    for r in (8, 4, 2, 1): a(f"v_max_f32_dpp v44, v44, v44 row_ror:{r} row_mask:0xf bank_mask:0xf")
    a("""v_mov_b32 v45, v44
    v_permlane16_swap_b32 v44, v45
    v_max_f32 v44, v44, v45
    s_mov_b32 s60, 0x3fb8aa3b
    v_sub_f32 v32, v32, v44
    v_mul_f32 v32, s60, v32
    v_exp_f32 v32, v32
    s_nop 0
    v_mul_f32 v45, v32, v33""")
    for r in (8, 4, 2, 1): a(f"v_add_f32_dpp v45, v45, v45 row_ror:{r} row_mask:0xf bank_mask:0xf")
    a("""v_mov_b32 v46, v45
    v_mov_b32 v36, v32
    v_permlane16_swap_b32 v45, v46
    v_permlane16_swap_b32 v32, v36
    v_add_f32 v45, v45, v46
    v_rcp_f32 v45, v45
    s_mov_b32 s59, 0
    s_nop 0
    v_mul_f32 v32, v32, v45
    v_mul_f32 v36, v36, v45""")
    a.label("L_apchk")
    a("s_waitcnt vmcnt(0)")
    for i in range(4): check4(12, 16+4*i, 14, first=(i == 0))
    a("v_cmp_ne_u32 vcc, 0, v12")
    a(f"s_add_u32 s59, s59, 1\ns_cbranch_vccz L_ook")
    if not opt.forceslow:
        a(f"s_cmp_eq_u32 s59, {NFAST}\ns_cselect_b32 s95, s101, 0\ns_cselect_b32 s101, 0, s101\ns_add_u32 s36, s36, s95\ns_add_u32 s37, s37, s95")
    a(f"s_cmp_gt_u32 s59, {SPIN_MAX}\ns_cbranch_scc1 L_ook")
    ap_gather()
    a("s_branch L_apchk")
    a.label("L_ook")
    stamp(5)
    for i in range(4): mask4(16+4*i)
    for k in range(8): a(f"v_mul_f32 v{16+k}, v32, v{16+k}")
    for k in range(8): a(f"v_fmac_f32 v{16+k}, v36, v{24+k}")
    for r in (8, 4, 2, 1):
        for k in range(8): a(f"v_add_f32_dpp v{16+k}, v{16+k}, v{16+k} row_ror:{r} row_mask:0xf bank_mask:0xf")
    for k in range(4): a(f"v_cvt_pk_bf16_f32 v{24+k}, v{16+2*k}, v{17+2*k}")
    mfma_tile(96, 24, 128)
    a("s_cmp_eq_u32 s3, 0\ns_cbranch_scc1 L_o0")
    row_to_lds(0)
    stamp(6)
    a("s_branch L_end")
    a.label("L_o0")
    a("s_nop 5")
    row_select()
    a(f"""s_cmp_lt_u32 s4, 4
    s_cselect_b32 s60, 32, 24
    s_cmp_lt_u32 s5, s60
    s_cselect_b32 s98, 1, 0
    v_mov_b32 v10, 0
    v_lshlrev_b32 v20, 4, v0
    s_mov_b32 s59, 0""")
    a.label("L_await_rows")
    a(f"""ds_read_b64 v[22:23], v10 offset:{L_FL+56}
    ds_read_b128 v[24:27], v20 offset:{L_OX}
    ds_read_b128 v[28:31], v20 offset:{L_OX+512}
    s_add_u32 s59, s59, 1
    s_waitcnt lgkmcnt(0)
    v_readfirstlane_b32 s60, v22
    v_readfirstlane_b32 s61, v23
    s_xor_b32 s96, s98, 1
    s_or_b32 s61, s61, s96
    s_and_b32 s60, s60, s61
    s_cmp_gt_u32 s59, {SPIN_MAX*16}
    s_cbranch_scc1 L_rows_x
    s_cmp_eq_u32 s60, 0
    s_cbranch_scc1 L_await_rows""")
    a.label("L_rows_x")
    for k in range(4): a(f"v_add_f32 v{16+k}, v{16+k}, v{24+k}")
    a("s_cmp_eq_u32 s98, 0\ns_cbranch_scc1 L_nodownrow")
    for k in range(4): a(f"v_add_f32 v{16+k}, v{16+k}, v{28+k}")
    a.label("L_nodownrow")
    tag4([16, 17, 18, 19])
    exec_set(-1, 0)
    a(f"buffer_store_dwordx4 v[16:19], v13, s[40:43], s39 offen {opt.opflag}")
    a("s_mov_b64 exec, -1")
    stamp(6)
    a("s_cmp_lt_u32 s2, 128\ns_cbranch_scc0 L_end")
    srd(44, 8, 1024)
    a(f"""s_lshl_b32 s60, s4, 4
    s_add_u32 s60, s60, s5
    s_lshl_b32 s61, s60, 3
    v_mov_b32 v13, s61
    buffer_load_dwordx2 v[28:29], v13, s[44:47], 0 offen
    s_lshl_b32 s61, s60, {10 if opt.opt_t else 4}
    s_add_u32 s61, s61, {WS_OP}
    v_lshlrev_b32 v12, {4 if opt.opt_t else 11}, v0
    s_mov_b32 s59, 0
    buffer_load_dwordx4 v[16:19], v12, s[40:43], s61 offen sc1""")
    a.label("L_fpoll")
    if opt.fsingle:
        a("s_waitcnt vmcnt(0)")
        check4(14, 16, 30, first=True)
        a(f"""v_cmp_ne_u32 vcc, 0, v14
        s_add_u32 s59, s59, 1
        s_cbranch_vccz L_fok
        s_cmp_gt_u32 s59, {SPIN_MAX}
        s_cbranch_scc1 L_fok""")
        if opt.fsleep: a(f"s_sleep {opt.fsleep}")
        a("buffer_load_dwordx4 v[16:19], v12, s[40:43], s61 offen sc1\ns_branch L_fpoll")
    else:
        if opt.fsleep: a(f"s_sleep {opt.fsleep}")
        a("buffer_load_dwordx4 v[20:23], v12, s[40:43], s61 offen sc1\ns_waitcnt vmcnt(1)")
        check4(14, 16, 30, first=True)
        a(f"""v_cmp_ne_u32 vcc, 0, v14
        s_add_u32 s59, s59, 1
        s_cbranch_vccz L_fok""")
        if opt.fsleep: a(f"s_sleep {opt.fsleep}")
        a("""buffer_load_dwordx4 v[16:19], v12, s[40:43], s61 offen sc1
        s_waitcnt vmcnt(1)""")
        check4(14, 20, 30, first=True)
        a(f"""v_cmp_ne_u32 vcc, 0, v14
        s_cbranch_vccz L_fok2
        s_cmp_gt_u32 s59, {SPIN_MAX}
        s_cbranch_scc0 L_fpoll""")
        a.label("L_fok2")
        a("s_waitcnt vmcnt(0)")
        for k in range(4): a(f"v_mov_b32 v{16+k}, v{20+k}")
    a.label("L_fok")
    stamp(7)
    mask4(16)
    for r in (8, 4, 2, 1):
        for k in range(4): a(f"v_add_f32_dpp v{16+k}, v{16+k}, v{16+k} row_ror:{r} row_mask:0xf bank_mask:0xf")
    for k in range(4): a(f"v_add_f32_dpp v{16+k}, v{16+k}, v{16+k} row_bcast:15 row_mask:0xa bank_mask:0xf")
    for k in range(4): a(f"v_add_f32_dpp v{16+k}, v{16+k}, v{16+k} row_bcast:31 row_mask:0xc bank_mask:0xf")
    a("""v_lshlrev_b32 v24, 16, v28
    v_and_b32 v25, 0xffff0000, v28
    v_lshlrev_b32 v26, 16, v29
    v_and_b32 v27, 0xffff0000, v29""")
    for k in range(4): a(f"v_add_f32 v{16+k}, v{16+k}, v{24+k}")
    a("v_cvt_pk_bf16_f32 v16, v16, v17\nv_cvt_pk_bf16_f32 v17, v18, v19")
    srd(44, 26, 1024)
    exec_set(0, "0x80000000")
    a("""buffer_store_dwordx2 v[16:17], v13, s[44:47], 0 offen
    s_cmp_eq_u32 s2, 0
    s_cbranch_scc0 L_noepoch
    v_mov_b32 v18, s7
    v_mov_b32 v19, 0""")
    a("buffer_store_dword v18, v19, s[40:43], 0 offen" + ("" if opt.eplain else " sc1"))
    a.label("L_noepoch")
    a("s_mov_b64 exec, -1")
    stamp(8)
    a.label("L_end")
    if opt.endwait: a("s_waitcnt vmcnt(0)")
    if opt.dbgstamps:
        a("""s_waitcnt lgkmcnt(0)
        s_cmp_eq_u32 s94, 2
        s_cbranch_scc0 L_exit
        s_and_b32 s96, s2, 0xfb
        s_cmp_eq_u32 s96, 0
        s_cbranch_scc0 L_exit
        s_lshl_b32 s96, s2, 3
        s_add_u32 s98, s28, s96
        s_addc_u32 s99, s29, 0
        s_mov_b64 exec, 1
        v_mov_b32 v4, 0""")
        for i in range(8):
            a(f"s_sub_u32 s96, s{64+2*(i+1)}, s64\nv_mov_b32 v2, s96\nglobal_store_dword v4, v2, s[98:99] offset:{4*i}\ns_nop 1")
        a("s_waitcnt vmcnt(0)\ns_branch L_exit")
    if opt.stamps and not opt.dbgstamps:
        a("""s_waitcnt lgkmcnt(0)
        s_lshl_b32 s96, s2, 4
        s_add_u32 s96, s96, s94
        s_lshl_b32 s96, s96, 7
        s_add_u32 s96, s96, 0x4000000
        s_add_u32 s98, s30, s96
        s_addc_u32 s99, s31, 0
        s_mov_b64 exec, 1
        v_mov_b32 v4, 0""")
        for i in range(NSTAMP):
            a(f"v_mov_b32 v2, s{64+2*i}\nv_mov_b32 v3, s{65+2*i}\nglobal_store_dwordx2 v4, v[2:3], s[98:99] offset:{8*i}\ns_nop 1")
        a("v_mov_b32 v2, 0x54414D50\nv_mov_b32 v3, 0x53\nglobal_store_dwordx2 v4, v[2:3], s[98:99] offset:120\ns_waitcnt vmcnt(0)")
    a.label("L_exit")
    a("s_endpgm")
    body = a.finish()
    hdr = f"""; Fused decode step: LayerNorm -> (GQA sliding-window attention + GEGLU FFN) -> residual sum.
; @launch grid=(256,1,1) block=(512,1,1) lds={LDS_BYTES}
.amdgcn_target "amdgcn-amd-amdhsa--gfx950"
.text
.globl {KNAME}
.p2align 8
.type {KNAME},@function
{KNAME}:
"""
    ftr = f""".section .rodata,"a"
.p2align 6
.amdhsa_kernel {KNAME}
  .amdhsa_next_free_vgpr 256
  .amdhsa_next_free_sgpr 102
  .amdhsa_accum_offset 256
  .amdhsa_group_segment_fixed_size 0
  .amdhsa_kernarg_size 96
  .amdhsa_user_sgpr_count 2
  .amdhsa_user_sgpr_kernarg_segment_ptr 1
  .amdhsa_system_sgpr_workgroup_id_x 1
  .amdhsa_float_denorm_mode_32 3
.end_amdhsa_kernel
"""
    return hdr + body + ftr, a.nnop

if __name__ == "__main__":
    import argparse
    ap = argparse.ArgumentParser()
    ap.add_argument("-o", default="out.s")
    ap.add_argument("--stamps", action="store_true")
    ap.add_argument("--nt", default="nt")
    ap.add_argument("--kv", type=int, default=3)
    ap.add_argument("--sleep", type=int, default=1)
    ap.add_argument("--nofast", action="store_true")
    ap.add_argument("--endwait", action="store_true")
    ap.add_argument("--opt_t", action="store_true")
    ap.add_argument("--dry", action="store_true")
    ap.add_argument("--nocpf", action="store_true")
    ap.add_argument("--v1", type=int, default=8)
    ap.add_argument("--fsleep", type=int, default=0)
    ap.add_argument("--fsingle", action="store_true")
    ap.add_argument("--noba", action="store_true")
    ap.add_argument("--fafter", action="store_true")
    ap.add_argument("--nowarm", action="store_true")
    ap.add_argument("--eplain", action="store_true")
    ap.add_argument("--opflag", default="sc1")
    ap.add_argument("--stouch", action="store_true")
    ap.add_argument("--dbgstamps", action="store_true")
    args = ap.parse_args()
    o = Opt(); o.stamps = args.stamps; o.nt = args.nt; o.kv = args.kv; o.sleep = args.sleep; o.forceslow = args.nofast; o.endwait = args.endwait; o.opt_t = args.opt_t; o.dry = args.dry; o.cpf = not args.nocpf; o.v1 = args.v1; o.fsleep = args.fsleep; o.fsingle = args.fsingle; o.ba = not args.noba; o.fafter = args.fafter; o.warm = not args.nowarm; o.eplain = args.eplain; o.opflag = args.opflag; o.stouch = args.stouch; o.dbgstamps = args.dbgstamps
    if o.dbgstamps: o.stamps = True
    text, nn = build(o)
    open(args.o, "w").write(text)
    print("wrote", args.o, "nops inserted:", nn, "lines:", text.count("\n"))
```
